```python
import torch

def _softmax(x, axis=-1):
    return torch.softmax(x, dim=axis)
def _gelu(x):
    return torch.nn.functional.gelu(x, approximate="tanh")
def _silu(x):
    return torch.nn.functional.silu(x)
def _sigmoid(x):
    return torch.sigmoid(x)
def _layernorm(x, axis=-1, eps=1e-5):
    m = x.mean(dim=axis, keepdim=True)
    v = x.var(dim=axis, keepdim=True, unbiased=False)
    return (x - m) / torch.sqrt(v + eps)
def _scatter_add(tgt, idx, src, axis=0):
    return tgt.clone().index_add_(axis, idx, src)
def _segment_sum(src, seg, n):
    out = torch.zeros((n,) + src.shape[1:], dtype=src.dtype)
    return out.index_add_(0, seg, src)
def _pad(x, pw):
    flat = tuple(v for pair in reversed(pw) for v in pair)
    return torch.nn.functional.pad(x, flat)

kernel_name = 'concat_heads__gqa_block_cached__gqa_block_cached__near_ridge'

def setup_inputs():

    _w = (lambda a: (lambda t: t.to(torch.bfloat16) if t.is_floating_point() else t)(torch.as_tensor(a)))
    def _A_setup():
        B, Sq, D = 32, 64, 576
        Hq, Hkv, Sk, Dh = 32, 16, 512, 128
        assert Hq % Hkv == 0, (Hq, Hkv)
        return {
            "x": _w((lambda *s: torch.randn(*s, dtype=torch.bfloat16) * 0.8)(B, Sq, D)),
            "k_cache": _w((lambda *s: torch.randn(*s, dtype=torch.bfloat16) * 0.8)(B, Hkv, Sk, Dh)),
            "v_cache": _w((lambda *s: torch.randn(*s, dtype=torch.bfloat16) * 0.05)(B, Hkv, Sk, Dh)),
            "wq": _w((lambda *s: torch.randn(*s, dtype=torch.bfloat16) * 0.8)(D, Hq * Dh) * (D ** -0.5)),
            "wo": _w((lambda *s: torch.randn(*s, dtype=torch.bfloat16) * 0.05)(Hq * Dh, D) * ((Hq * Dh) ** -0.5)),
        }
    _A_in = _A_setup()

    def _B_setup():
        B, Sq, D = 32, 64, 576
        Hq, Hkv, Sk, Dh = 32, 16, 512, 128
        assert Hq % Hkv == 0, (Hq, Hkv)
        return {
            "x": _w((lambda *s: torch.randn(*s, dtype=torch.bfloat16) * 0.8)(B, Sq, D)),
            "k_cache": _w((lambda *s: torch.randn(*s, dtype=torch.bfloat16) * 0.8)(B, Hkv, Sk, Dh)),
            "v_cache": _w((lambda *s: torch.randn(*s, dtype=torch.bfloat16) * 0.05)(B, Hkv, Sk, Dh)),
            "wq": _w((lambda *s: torch.randn(*s, dtype=torch.bfloat16) * 0.8)(D, Hq * Dh) * (D ** -0.5)),
            "wo": _w((lambda *s: torch.randn(*s, dtype=torch.bfloat16) * 0.05)(Hq * Dh, D) * ((Hq * Dh) ** -0.5)),
        }
    _B_in = _B_setup()

    return {
        "A_x": _A_in["x"],
        "A_k_cache": _A_in["k_cache"],
        "A_v_cache": _A_in["v_cache"],
        "A_wq": _A_in["wq"],
        "A_wo": _A_in["wo"],
        "B_x": _B_in["x"],
        "B_k_cache": _B_in["k_cache"],
        "B_v_cache": _B_in["v_cache"],
        "B_wq": _B_in["wq"],
        "B_wo": _B_in["wo"],
    }

def reference(A_x, A_k_cache, A_v_cache, A_wq, A_wo, B_x, B_k_cache, B_v_cache, B_wq, B_wo):
    def _A_ref(x, k_cache, v_cache, wq, wo):
        B, Sq, D = x.shape
        Hq, Dh = 32, 128
        Hkv = k_cache.shape[1]
        rep = Hq // Hkv
        q = (lambda x, *d: x.permute(*d))((x @ wq).reshape(B, Sq, Hq, Dh), 0, 2, 1, 3)
        k = (lambda x, n, axis: torch.repeat_interleave(x, n, dim=axis))(k_cache, rep, axis=1)
        v = (lambda x, n, axis: torch.repeat_interleave(x, n, dim=axis))(v_cache, rep, axis=1)
        scores = torch.einsum("bhqd,bhkd->bhqk", q, k) * (Dh ** -0.5)
        p = _softmax(scores, axis=-1)
        o = torch.einsum("bhqk,bhkd->bhqd", p, v)
        return (lambda x, *d: x.permute(*d))(o, 0, 2, 1, 3).reshape(B, Sq, Hq * Dh) @ wo

    def _B_ref(x, k_cache, v_cache, wq, wo):
        B, Sq, D = x.shape
        Hq, Dh = 32, 128
        Hkv = k_cache.shape[1]
        rep = Hq // Hkv
        q = (lambda x, *d: x.permute(*d))((x @ wq).reshape(B, Sq, Hq, Dh), 0, 2, 1, 3)
        k = (lambda x, n, axis: torch.repeat_interleave(x, n, dim=axis))(k_cache, rep, axis=1)
        v = (lambda x, n, axis: torch.repeat_interleave(x, n, dim=axis))(v_cache, rep, axis=1)
        scores = torch.einsum("bhqd,bhkd->bhqk", q, k) * (Dh ** -0.5)
        p = _softmax(scores, axis=-1)
        o = torch.einsum("bhqk,bhkd->bhqd", p, v)
        return (lambda x, *d: x.permute(*d))(o, 0, 2, 1, 3).reshape(B, Sq, Hq * Dh) @ wo

    a = _A_ref(A_x, A_k_cache, A_v_cache, A_wq, A_wo)
    b = _B_ref(B_x, B_k_cache, B_v_cache, B_wq, B_wo)
    return torch.concatenate([a, b], axis=-1)
```

```python
import re

TRANS = {'v_exp_f32', 'v_log_f32', 'v_rcp_f32', 'v_rsq_f32', 'v_sqrt_f32', 'v_sin_f32', 'v_cos_f32'}

def regs(op):
    op = op.strip()
    if op.startswith('-'):
        op = op[1:]
    m = re.fullmatch(r'([vsa])\[(\d+):(\d+)\]', op)
    if m:
        return [f'{m.group(1)}{i}' for i in range(int(m.group(2)), int(m.group(3)) + 1)]
    m = re.fullmatch(r'([vsa])(\d+)', op)
    if m:
        return [op]
    if op in ('vcc', 'm0', 'exec', 'scc'):
        return [op]
    return []

def v(n, cnt=1):
    return f'v{n}' if cnt == 1 else f'v[{n}:{n+cnt-1}]'

def s(n, cnt=1):
    return f's{n}' if cnt == 1 else f's[{n}:{n+cnt-1}]'

class Ins:
    __slots__ = ('text', 'op', 'kind', 'wr', 'rd', 'passes', 'srcC', 'srcAB', 'states', 'wide_store', 'target', 'dmalds', 'storedata')
    def __init__(self):
        self.wr = set(); self.rd = set(); self.passes = 0; self.srcC = []; self.srcAB = set()
        self.states = 1; self.wide_store = False; self.target = None; self.dmalds = False; self.storedata = set()

def need(p, c):
    n = 0
    if p.kind == 'label' or c.kind == 'label':
        return 0
    pv = {r for r in p.wr if r[0] in 'va'}
    ps = {r for r in p.wr if r[0] == 's' or r == 'vcc'}
    if p.kind == 'valu':
        if c.kind == 'mfma' and pv & c.rd:
            n = max(n, 2)
        if c.kind == 'valu':
            if p.op in TRANS and c.op not in TRANS and pv & (c.rd | c.wr):
                n = max(n, 1)
            if c.op.startswith('v_permlane') and pv & c.rd:
                n = max(n, 2)
            if c.op in ('v_readfirstlane_b32', 'v_readlane_b32') and pv & c.rd:
                n = max(n, 1)
            if 'dpp' in c.text and pv & c.rd:
                n = max(n, 2)
            if ps & c.rd:
                n = max(n, 4 if c.op in ('v_readlane_b32', 'v_writelane_b32', 'v_div_fmas_f32') else 2)
        if c.kind == 'vmem' and ps & c.rd:
            n = max(n, 5)
        if 'exec' in p.wr:
            n = max(n, 5)
    if p.kind == 'mfma':
        P = p.passes
        tab_c_ovl = {2: 4, 4: 6, 8: 10, 16: 18}[P]
        tab_ab = {2: 5, 4: 8, 8: 12, 16: 20}[P]
        tab_war = {2: 1, 4: 3, 8: 7, 16: 15}[P]
        if c.kind == 'mfma':
            if pv & c.srcAB:
                n = max(n, tab_ab)
            if pv & set(c.srcC):
                if sorted(pv) == sorted(c.srcC) and c.passes == P:
                    n = max(n, 2 if P == 2 else 0)
                else:
                    n = max(n, tab_c_ovl)
            if pv & c.wr and not (pv & set(c.srcC)):
                n = max(n, tab_c_ovl)
        elif c.kind in ('valu', 'vmem', 'ds'):
            if pv & (c.rd | c.wr):
                n = max(n, tab_ab)
            if c.kind == 'valu' and set(p.srcC) & c.wr:
                n = max(n, tab_war)
    if p.kind == 'salu' and 'm0' in p.wr and (c.dmalds or 'addtid' in c.op):
        n = max(n, 1)
    if p.wide_store and p.storedata & c.wr:
        n = max(n, 2 if c.kind == 'valu' else 1)
    return n

class Asm:
    def __init__(self):
        self.ins = []
        self.nlab = 0

    def raw(self, text):
        i = Ins(); i.text = text; i.op = 'raw'; i.kind = 'label'; i.states = 0
        self.ins.append(i)

    def label(self, name):
        i = Ins(); i.text = name + ':'; i.op = name; i.kind = 'label'; i.states = 0
        self.ins.append(i)

    def comment(self, t):
        self.raw('; ' + t)

    def newlabel(self, base='L'):
        self.nlab += 1
        return f'{base}_{self.nlab}'

    def _classify(self, op, ops, mods):
        i = Ins(); i.op = op
        i.text = op + (' ' + ', '.join(ops) if ops else '') + ((' ' + mods) if mods else '')
        R = [regs(o) for o in ops]
        if op.startswith('v_mfma'):
            i.kind = 'mfma'
            i.passes = 8 if '32x32x16' in op else 4
            i.wr = set(R[0]); i.srcAB = set(R[1]) | set(R[2]); i.srcC = list(R[3])
            i.rd = i.srcAB | set(i.srcC)
        elif op.startswith('v_'):
            i.kind = 'valu'
            if op.startswith('v_permlane') or op.startswith('v_swap'):
                i.wr = set(R[0]) | set(R[1]); i.rd = set(R[0]) | set(R[1])
            elif op in ('v_add_co_u32', 'v_sub_co_u32', 'v_addc_co_u32', 'v_subb_co_u32', 'v_mad_u64_u32'):
                i.wr = set(R[0]) | set(R[1]); i.rd = set(sum(R[2:], []))
            else:
                i.wr = set(R[0]); i.rd = set(sum(R[1:], []))
                if op.startswith('v_fmac') or op.startswith('v_writelane') or 'dpp' in mods:
                    i.rd |= set(R[0])
                if op.startswith('v_cndmask') and len(ops) == 3:
                    i.rd.add('vcc')
                if op.startswith('v_cmpx'):
                    i.wr.add('exec')
        elif op.startswith('ds_'):
            i.kind = 'ds'
            if op.startswith('ds_read') or op.startswith('ds_bpermute') or op.startswith('ds_swizzle'):
                i.wr = set(R[0]); i.rd = set(sum(R[1:], []))
            else:
                i.rd = set(sum(R, []))
        elif op.startswith('buffer_') or op.startswith('global_'):
            i.kind = 'vmem'
            if 'lds' in mods.split():
                i.dmalds = True
                i.rd = set(sum(R, [])) | {'m0'}
            elif '_load' in op:
                i.wr = set(R[0]); i.rd = set(sum(R[1:], []))
            elif '_store' in op or '_atomic' in op:
                i.rd = set(sum(R, []))
                if op.endswith('x4') or op.endswith('x3'):
                    i.wide_store = True
                    i.storedata = set(R[0] if op.startswith('buffer') else R[1])
                if '_atomic' in op and 'sc0' in mods.split():
                    i.wr = set(R[0])
            else:
                pass
        elif op.startswith('s_'):
            i.kind = 'salu'
            if op == 's_nop':
                i.states = int(ops[0]) + 1
            elif op.startswith('s_cbranch') or op == 's_branch':
                i.target = ops[0]
            elif op.startswith('s_cmp') or op in ('s_waitcnt', 's_barrier', 's_setprio', 's_endpgm', 's_sleep'):
                i.rd = set(sum(R, []))
            else:
                i.wr = set(R[0]) if R else set(); i.rd = set(sum(R[1:], []))
                if 'saveexec' in op:
                    i.wr.add('exec')
        else:
            raise ValueError(op)
        return i

    def emit(self, op, *ops, mods=''):
        ops = [str(o) for o in ops]
        c = self._classify(op, ops, mods)
        dist = 0
        req = 0
        for p in reversed(self.ins):
            if dist >= 20:
                break
            n = need(p, c)
            if n - dist > req:
                req = n - dist
            dist += p.states
        while req > 0:
            k = min(req, 16)
            self.ins.append(self._classify('s_nop', [str(k - 1)], ''))
            req -= k
        self.ins.append(c)
        return c

    __call__ = emit

    def waitcnt(self, vm=None, lgkm=None):
        t = []
        if vm is not None: t.append(f'vmcnt({vm})')
        if lgkm is not None: t.append(f'lgkmcnt({lgkm})')
        i = Ins(); i.op = 's_waitcnt'; i.kind = 'salu'; i.text = 's_waitcnt ' + ' '.join(t)
        self.ins.append(i)

    def check_branches(self):
        pos = {i.op: k for k, i in enumerate(self.ins) if i.kind == 'label' and i.op != 'raw'}
        errs = []
        for k, b in enumerate(self.ins):
            if b.target is None:
                continue
            j = pos.get(b.target)
            if j is None:
                errs.append(f'unknown label {b.target}')
                continue
            cd = 0
            for c in self.ins[j:j + 40]:
                if cd >= 20:
                    break
                dist = cd
                for p in reversed(self.ins[max(0, k - 40):k + 1]):
                    if dist >= 20:
                        break
                    n = need(p, c)
                    if n > dist:
                        errs.append(f'hazard across branch to {b.target}: [{p.text}] -> [{c.text}] need {n} have {dist}')
                    dist += p.states
                cd += c.states
                if c.op == 's_branch' or c.op == 's_endpgm':
                    break
        return errs

    def text(self):
        out = []
        for i in self.ins:
            if i.kind == 'label':
                out.append(i.text)
            else:
                out.append('    ' + i.text)
        return '\n'.join(out) + '\n'
```

```python
import sys, math
sys.path.insert(0, 'gen')
from asmlib import *

NAME = 'concat_heads__gqa_block_cached__gqa_block_cached__near_ridge'
HDR = open('cdna_kernels/' + NAME + '.s.ref').read().split('\n')

X_BYTES = 32 * 64 * 576 * 2
KV_BYTES = 32 * 16 * 512 * 128 * 2
W_BYTES = 576 * 4096 * 2
OUT_BYTES = 32 * 64 * 1152 * 2
O_WS_BYTES = 2 * 32 * 64 * 4096 * 2

class Cnt:
    def __init__(self, A, which, maxn):
        self.A = A; self.which = which; self.p = []; self.maxn = maxn
    def issue(self, tag):
        self.p.append(tag)
        assert len(self.p) <= self.maxn, (self.which, len(self.p))
    def wait(self, tag):
        idx = None
        for k, t in enumerate(self.p):
            if t == tag:
                idx = k
        if idx is None:
            return
        n = len(self.p) - idx - 1
        if self.which == 'vm':
            self.A.waitcnt(vm=n)
        else:
            self.A.waitcnt(lgkm=n)
        self.p = self.p[idx + 1:]
    def waitall(self):
        if self.which == 'vm':
            self.A.waitcnt(vm=0)
        else:
            self.A.waitcnt(lgkm=0)
        self.p = []


def srd(A, d, plo, nbytes):
    A('s_mov_b32', s(d), s(plo))
    A('s_and_b32', s(d + 1), s(plo + 1), '0xffff')
    A('s_mov_b32', s(d + 2), hex(nbytes))
    A('s_mov_b32', s(d + 3), '0x00020000')


def interleave(A, mf, va, per):
    vi = 0
    for k, m in enumerate(mf):
        m()
        n = per[k] if isinstance(per, (list, tuple)) else per
        for _ in range(n):
            if vi < len(va):
                va[vi](); vi += 1
    while vi < len(va):
        va[vi](); vi += 1


def kernel_a(A, opt):
    kn = 'attn_kernel'
    A.raw('.globl %s\n.p2align 8\n.type %s,@function' % (kn, kn))
    A.label(kn)
    sX, sK, sV, sW, sO = 4, 8, 12, 16, 20
    sWave, sKVoff, sT, sTmp, sTmp2 = 24, 25, 26, 27, 28
    sM0K0, sM0V0, sM0K1, sM0V1 = 29, 30, 31, 32
    sC = 33
    sWoff, sXoff, sCk, sIt = 34, 35, 36, 37
    sM0W0, sM0X0, sM0W1, sM0X1 = 38, 39, 40, 41
    sOoff = 42
    sB = 43
    sP, sHkv, sBp = 44, 45, 46
    vTid, vLane, vT0, vT1 = 0, 1, 2, 3
    vKa, vVa, vKd, vVd, vOst, vM, vL = 4, 12, 16, 20, 21, 22, 23
    vt = list(range(24, 32))
    vQ0, vQ1 = 32, 64
    vO = 96
    vS = 160
    vP = 192
    vF = 208
    vAcc = 96
    vQA = 32
    vQB = 64
    vWa, vXa, vWd, vXd = 80, 84, 86, 90
    K0, V0, K1, V1 = 0, 16384, 32768, 49152
    ST = [32768, 57344]

    A('s_cmp_ge_u32', 's2', '512')
    A('s_cbranch_scc1', 'LA_done')
    A('s_load_dwordx8', s(48, 8), s(0, 2), '0')
    A('s_load_dwordx8', s(56, 8), s(0, 2), '40')
    A('s_load_dwordx2', s(64, 2), s(0, 2), '96')
    A('s_and_b32', s(sTmp), 's2', '7')
    A('s_lshr_b32', s(sTmp2), 's2', '3')
    A('s_lshl_b32', s(sTmp), s(sTmp), '2')
    A('s_and_b32', s(sHkv), s(sTmp2), '3')
    A('s_add_u32', s(sTmp), s(sTmp), s(sHkv))
    A('s_lshr_b32', s(sP), s(sTmp), '4')
    A('s_and_b32', s(sHkv), s(sTmp), '15')
    A('s_lshr_b32', s(sBp), s(sTmp2), '2')
    A('v_and_b32', v(vLane), '63', v(vTid))
    A('v_lshrrev_b32', v(vT0), '6', v(vTid))
    A('v_readfirstlane_b32', s(sWave), v(vT0))
    A.waitcnt(lgkm=0)
    A('s_cmp_eq_u32', s(sP), '0')
    for k in range(4):
        A('s_cselect_b64', s(66 + 2 * k, 2), s(48 + 2 * k, 2), s(56 + 2 * k, 2))
    srd(A, sX, 66, X_BYTES)
    srd(A, sK, 68, KV_BYTES)
    srd(A, sV, 70, KV_BYTES)
    srd(A, sW, 72, W_BYTES)
    srd(A, sO, 64, O_WS_BYTES)
    A('s_mov_b32', s(sC), hex(int.from_bytes(__import__('struct').pack('<f', (128 ** -0.5) * math.log2(math.e)), 'little')))

    L = v(vLane)
    t0, t1, t2, t3, t4, t5 = [v(x) for x in vt[:6]]
    A('v_lshrrev_b32', t0, '4', L)
    A('v_and_b32', t1, '15', L)
    for jj in range(4):
        A('v_add_u32', t2, str(4 * jj), t0)
        A('v_xor_b32', t2, t2, t1)
        A('v_lshlrev_b32', t2, '4', t2)
        A('v_lshl_add_u32', v(vKd + jj), t0, '8', t2)
    A('v_lshlrev_b32', t2, '2', t0)
    A('v_xor_b32', t2, t2, t1)
    A('v_lshlrev_b32', t2, '4', t2)
    A('v_lshl_add_u32', v(vVd), t0, '8', t2)
    A('v_and_b32', t0, '31', L)
    A('v_lshrrev_b32', t1, '5', L)
    A('v_and_b32', t2, '15', L)
    A('v_xor_b32', t2, t2, t1)
    for sidx in range(8):
        A('v_xor_b32', t3, str(2 * sidx), t2)
        A('v_lshlrev_b32', t3, '4', t3)
        A('v_lshl_add_u32', v(vKa + sidx), t0, '8', t3)
    A('v_bfe_u32', t0, L, '2', '2')
    A('v_and_b32', t2, '3', L)
    A('v_bfe_u32', t3, L, '4', '1')
    A('v_lshl_add_u32', t4, t1, '2', t0)
    A('v_lshlrev_b32', t4, '8', t4)
    A('v_lshl_add_u32', t4, t3, '5', t4)
    A('v_lshl_add_u32', t4, t2, '3', t4)
    for t in range(4):
        A('v_xor_b32', t5, str(t), t0)
        A('v_lshl_add_u32', v(vVa + t), t5, '6', t4)
    A('v_bfe_u32', t0, L, '4', '1')
    A('v_and_b32', t2, '15', L)
    A('v_lshlrev_b32', t2, '4', t2)
    A('v_lshl_add_u32', t2, t0, '10', t2)
    A('v_lshl_add_u32', v(vOst), t1, '8', t2)
    A('v_lshrrev_b32', t0, '5', L)
    A('v_and_b32', t2, '31', L)
    for jj in range(4):
        A('v_add_u32', t3, str((2 * jj) & 3), t0)
        A('v_lshlrev_b32', t3, '2', t3)
        A('v_xor_b32', t3, t3, t2)
        A('v_lshlrev_b32', t3, '4', t3)
        A('v_lshl_add_u32', t3, t0, '13', t3)
        A('v_add_u32', v(vWd + jj), str(jj * (16384 - 1024)), t3)
    A('v_lshrrev_b32', t0, '2', L)
    A('v_and_b32', t2, '3', L)
    A('v_bfe_u32', t3, L, '4', '2')
    A('v_xor_b32', t2, t2, t3)
    A('v_lshlrev_b32', t2, '4', t2)
    A('s_movk_i32', s(sTmp), '1152')
    A('v_mul_lo_u32', t0, t0, s(sTmp))
    A('v_add_u32', v(vXd), t0, t2)
    A('v_add_u32', v(vXd + 1), str(16 * 1152 - 1024), v(vXd))
    A('v_bfe_u32', t0, L, '2', '2')
    A('v_and_b32', t2, '1', L)
    A('v_bfe_u32', t3, L, '1', '1')
    A('v_lshl_add_u32', t2, t2, '1', t3)
    A('v_bfe_u32', t3, L, '4', '1')
    A('v_lshl_add_u32', t4, t1, '3', t0)
    A('v_lshlrev_b32', t4, '9', t4)
    A('v_lshl_add_u32', t4, t3, '5', t4)
    A('v_lshl_add_u32', t4, t2, '3', t4)
    A('s_lshr_b32', s(sTmp), s(sWave), '1')
    A('s_lshl_b32', s(sTmp), s(sTmp), '8')
    A('s_add_u32', s(sTmp), s(sTmp), str(ST[0]))
    A('v_add_u32', t4, s(sTmp), t4)
    for t in range(4):
        A('v_xor_b32', t5, str(t), t0)
        A('v_lshl_add_u32', v(vWa + t), t5, '6', t4)
    A('v_and_b32', t0, '31', L)
    A('s_and_b32', s(sTmp), s(sWave), '1')
    A('s_lshl_b32', s(sTmp), s(sTmp), '5')
    A('v_add_u32', t0, s(sTmp), t0)
    A('v_bfe_u32', t2, L, '2', '2')
    A('v_xor_b32', t2, t2, t1)
    for sidx in range(2):
        A('v_xor_b32', t3, str(2 * sidx), t2)
        A('v_lshlrev_b32', t3, '4', t3)
        A('v_lshl_add_u32', v(vXa + sidx), t0, '6', t3)
        A('v_add_u32', v(vXa + sidx), str(ST[0]), v(vXa + sidx))

    A('s_lshl_b32', s(sTmp), s(sWave), '12')
    A('s_add_u32', s(sM0K0), s(sTmp), str(K0))
    A('s_add_u32', s(sM0V0), s(sTmp), str(V0))
    A('s_add_u32', s(sM0K1), s(sTmp), str(K1))
    A('s_add_u32', s(sM0V1), s(sTmp), str(V1))
    A('s_add_u32', s(sM0W0), s(sTmp), str(ST[0]))
    A('s_add_u32', s(sM0W1), s(sTmp), str(ST[1]))
    A('s_lshl_b32', s(sTmp2), s(sWave), '11')
    A('s_add_u32', s(sM0X0), s(sTmp2), str(ST[0] + 16384))
    A('s_add_u32', s(sM0X1), s(sTmp2), str(ST[1] + 16384))
    A('s_lshl_b32', s(sKVoff), s(sBp), '5')
    A('s_add_u32', s(sKVoff), s(sKVoff), s(sHkv))
    A('s_lshl_b32', s(sKVoff), s(sKVoff), '17')
    A('s_add_u32', s(sKVoff), s(sKVoff), s(sTmp))
    if opt.get('stagger', True):
        A('s_mov_b32', s(sCk), s(sBp))
    else:
        A('s_mov_b32', s(sCk), '0')
    sWbase, sXbase = 74, 75
    A('s_lshl_b32', s(sWbase), s(sHkv), '9')
    A('s_lshl_b32', s(sTmp), s(sWave), '16')
    A('s_add_u32', s(sWbase), s(sWbase), s(sTmp))
    A('s_lshl_b32', s(sXbase), s(sBp), '7')
    A('s_lshl_b32', s(sTmp), s(sWave), '5')
    A('s_add_u32', s(sXbase), s(sXbase), s(sTmp))
    A('s_mulk_i32', s(sXbase), '1152')
    A('s_lshl_b32', s(sOoff), s(sP), '5')
    A('s_lshl_b32', s(sTmp), s(sBp), '1')
    A('s_add_u32', s(sOoff), s(sOoff), s(sTmp))
    A('s_lshl_b32', s(sOoff), s(sOoff), '7')
    A('s_lshl_b32', s(sTmp), s(sHkv), '3')
    A('s_add_u32', s(sOoff), s(sOoff), s(sTmp))
    A('s_lshr_b32', s(sTmp), s(sWave), '1')
    A('s_lshl_b32', s(sTmp), s(sTmp), '2')
    A('s_add_u32', s(sOoff), s(sOoff), s(sTmp))
    A('s_lshl_b32', s(sOoff), s(sOoff), '12')
    A('s_and_b32', s(sTmp), s(sWave), '1')
    A('s_lshl_b32', s(sTmp), s(sTmp), '11')
    A('s_add_u32', s(sOoff), s(sOoff), s(sTmp))

    kvflags = opt.get('kvflags', 'nt')
    wflags = opt.get('wflags', '')

    def dma_kv(m0k, m0v):
        A('s_mov_b32', 'm0', s(m0k))
        for jj in range(4):
            A('buffer_load_dwordx4', v(vKd + jj), s(sK, 4), s(sKVoff), mods=f'offen offset:{jj*1024} {kvflags} lds')
        A('s_mov_b32', 'm0', s(m0v))
        for jj in range(4):
            A('buffer_load_dwordx4', v(vVd), s(sV, 4), s(sKVoff), mods=f'offen offset:{jj*1024} {kvflags} lds')

    def dma_qp(m0w, m0x):
        A('s_lshl_b32', s(sWoff), s(sCk), '18')
        A('s_add_u32', s(sWoff), s(sWoff), s(sWbase))
        A('s_lshl_b32', s(sXoff), s(sCk), '6')
        A('s_add_u32', s(sXoff), s(sXoff), s(sXbase))
        A('s_mov_b32', 'm0', s(m0w))
        for jj in range(4):
            A('buffer_load_dwordx4', v(vWd + jj), s(sW, 4), s(sWoff), mods=f'offen offset:{jj*1024} {wflags} lds')
        A('s_mov_b32', 'm0', s(m0x))
        for jj in range(2):
            A('buffer_load_dwordx4', v(vXd + jj), s(sX, 4), s(sXoff), mods=f'offen offset:{jj*1024} {wflags} lds')
        A('s_add_u32', s(sCk), s(sCk), '1')
        A('s_cmp_eq_u32', s(sCk), '18')
        A('s_cselect_b32', s(sCk), '0', s(sCk))

    dma_qp(sM0W0, sM0X0)
    dma_kv(sM0K0, sM0V0)
    for r in range(128):
        A('v_mov_b32', v(vAcc + r), '0')
    A('s_mov_b32', s(sIt), '0')

    lg = Cnt(A, 'lgkm', 15)

    def qp_reads(st, sidx, t_list, b_list):
        for t in t_list:
            for e in range(2):
                A('ds_read_b64_tr_b16', v(vQA + 16 * sidx + 4 * t + 2 * e, 2), v(vWa + t),
                  mods=f'offset:{ST[st] - ST[0] + (16 * sidx + 4 * e) * 512}')
                lg.issue(('A', sidx, t))
        for bb in b_list:
            A('ds_read_b128', v(vQB + 8 * sidx + 4 * bb, 4), v(vXa + sidx), mods=f'offset:{ST[st] - ST[0] + 16384 + bb * 4096}')
            lg.issue(('B', sidx, bb))

    A.label('LA_qp')
    for st in range(2):
        A.waitcnt(vm=0)
        A('s_barrier')
        if st == 1:
            A('s_cmp_eq_u32', s(sIt), '8')
            A('s_cbranch_scc1', 'LA_qp_nopf')
        dma_qp(sM0W1 if st == 0 else sM0W0, sM0X1 if st == 0 else sM0X0)
        if st == 1:
            A.label('LA_qp_nopf')
        qp_reads(st, 0, [0], [0, 1])
        qp_reads(st, 0, [1, 2, 3], [])
        for sidx in range(2):
            for t in range(4):
                for bb in range(2):
                    lg.wait(('A', sidx, t)); lg.wait(('B', sidx, bb))
                    acc = v(vAcc + (t * 2 + bb) * 16, 16)
                    A('v_mfma_f32_32x32x16_bf16', acc, v(vQA + 16 * sidx + 4 * t, 4), v(vQB + 8 * sidx + 4 * bb, 4), acc)
                    if sidx == 0:
                        if t == 0 and bb == 0: qp_reads(st, 1, [0], [0])
                        if t == 0 and bb == 1: qp_reads(st, 1, [], [1])
                        if t >= 1 and bb == 0: qp_reads(st, 1, [t], [])
        assert not lg.p
    A('s_add_u32', s(sIt), s(sIt), '1')
    A('s_cmp_lt_u32', s(sIt), '9')
    A('s_cbranch_scc1', 'LA_qp')

    for bb in range(2):
        for t in range(4):
            for hf in range(2):
                for i in range(4):
                    a = vAcc + (t * 2 + bb) * 16 + 8 * hf + 2 * i
                    A('v_cvt_pk_bf16_f32', v((vQ0 if bb == 0 else vQ1) + 4 * (2 * t + hf) + i), v(a), v(a + 1))

    A('s_mov_b32', s(sT), '0')
    A('s_mov_b32', s(sB), '0')
    A.label('LA_batch')
    for r in range(64):
        A('v_mov_b32', v(vO + r), '0')
    A('v_mov_b32', v(vM), '0xff800000')
    A('v_mov_b32', v(vL), '0')
    A('s_mov_b32', s(sIt), '0')
    A.label('LA_tile')
    for par in range(2):
        KB, VB = (K0, V0) if par == 0 else (K1, V1)
        A.waitcnt(vm=0)
        A('s_barrier')
        lab = f'LA_nopf{par}'
        A('s_cmp_eq_u32', s(sT), '15')
        A('s_cbranch_scc1', lab)
        A('s_cmp_eq_u32', s(sT), '7')
        A('s_cselect_b32', s(sTmp), hex((16 << 17) - 8 * 16384), '0')
        A('s_add_u32', s(sKVoff), s(sKVoff), s(sTmp))
        A('s_add_u32', s(sKVoff), s(sKVoff), '0x4000')
        dma_kv(sM0K1 if par == 0 else sM0K0, sM0V1 if par == 0 else sM0V0)
        A.label(lab)
        A('s_add_u32', s(sT), s(sT), '1')
        def kread(k):
            u, sidx = k >> 3, k & 7
            A('ds_read_b128', v(vF + 4 * (k % 8), 4), v(vKa + sidx), mods=f'offset:{KB + u * 8192}')
            lg.issue(('K', k))
        def vread(k):
            e, t = k >> 2, k & 3
            slot = (8 + k) % 12
            for h2 in range(2):
                A('ds_read_b64_tr_b16', v(vF + 4 * slot + 2 * h2, 2), v(vVa + t), mods=f'offset:{VB + (16 * e + 8 * h2) * 256}')
                lg.issue(('V', k))
        for k in range(6):
            kread(k)
        mx = v(vt[0]); mx2 = v(vt[1])
        def max_items(u, first):
            it = []
            base = vS + 16 * u
            if first:
                it.append(lambda: A('v_max3_f32', mx, v(base), v(base + 1), v(base + 2)))
                rest = list(range(3, 16))
            else:
                rest = list(range(0, 16))
            while len(rest) >= 2:
                a, b = rest[0], rest[1]; rest = rest[2:]
                it.append(lambda a=a, b=b: A('v_max3_f32', mx, mx, v(base + a), v(base + b)))
            if rest:
                a = rest[0]
                it.append(lambda a=a: A('v_max_f32', mx, mx, v(base + a)))
            return it
        m0items = max_items(0, True)
        for k in range(16):
            u, sidx = k >> 3, k & 7
            lg.wait(('K', k))
            acc = v(vS + 16 * u, 16)
            A('v_mfma_f32_32x32x16_bf16', acc, v(vF + 4 * (k % 8), 4), v(vQ0 + 4 * sidx, 4), '0' if sidx == 0 else acc)
            if k + 6 < 16:
                kread(k + 6)
            elif k + 6 < 20:
                vread(k + 6 - 16)
            if k >= 11 and m0items:
                m0items.pop(0)()
                if m0items: m0items.pop(0)()
        for it in m0items:
            it()
        for it in max_items(1, False):
            it()
        A('v_mov_b32', mx2, mx)
        A('v_permlane32_swap_b32', mx, mx2)
        mnew = v(vt[2]); alpha = v(vt[3]); mc = v(vt[4])
        A('v_max3_f32', mnew, mx, mx2, v(vM))
        A('v_sub_f32', alpha, v(vM), mnew)
        A('v_mul_f32', alpha, s(sC), alpha)
        A('v_exp_f32', alpha, alpha)
        A('v_mul_f32', mc, s(sC), mnew)
        A('v_mov_b32', v(vM), mnew)
        A('v_mul_f32', v(vL), v(vL), alpha)
        def p_items(e):
            it = []
            base = vS + 8 * e
            for r in range(8):
                it.append(lambda r=r: A('v_fma_f32', v(base + r), v(base + r), s(sC), '-' + mc))
            for r in range(8):
                it.append(lambda r=r: A('v_exp_f32', v(base + r), v(base + r)))
            for i in range(4):
                it.append(lambda i=i: A('v_cvt_pk_bf16_f32', v(vP + 4 * e + i), v(base + 2 * i), v(base + 2 * i + 1)))
            for r in range(8):
                it.append(lambda r=r: A('v_add_f32', v(vL), v(vL), v(base + r)))
            return it
        def resc_items(t):
            return [lambda r=r: A('v_mul_f32', v(vO + 16 * t + r), v(vO + 16 * t + r), alpha) for r in range(16)]
        def pv(k):
            e, t = k >> 2, k & 3
            slot = (8 + k) % 12
            lg.wait(('V', k))
            acc = v(vO + 16 * t, 16)
            A('v_mfma_f32_32x32x16_bf16', acc, v(vF + 4 * slot, 4), v(vP + 4 * e, 4), acc)
        for k in range(4, 7):
            vread(k)
        for it in p_items(0)[:20]:
            it()
        addl0 = p_items(0)[20:]
        for it in resc_items(0):
            it()
        nxt = 7
        for k in range(16):
            e, t = k >> 2, k & 3
            pv(k)
            if nxt < 16:
                vread(nxt); nxt += 1
            if e == 0:
                if t < 3:
                    for it in resc_items(t + 1): it()
                else:
                    for it in p_items(1)[:20]: it()
            elif e < 3:
                items = p_items(e + 1)[:20]
                for it in items[5 * t:5 * t + 5]: it()
                extra = (addl0 if e == 1 else p_items(1)[20:])
                for it in extra[2 * t:2 * t + 2]: it()
            else:
                extra = p_items(2)[20:] + p_items(3)[20:]
                for it in extra[4 * t:4 * t + 4]: it()
        assert not lg.p, lg.p
    A('s_add_u32', s(sIt), s(sIt), '1')
    A('s_cmp_lt_u32', s(sIt), '4')
    A('s_cbranch_scc1', 'LA_tile')
    l2 = v(vt[0]); inv = v(vt[1])
    A('v_mov_b32', l2, v(vL))
    A('v_permlane32_swap_b32', v(vL), l2)
    A('v_add_f32', l2, l2, v(vL))
    A('v_rcp_f32', inv, l2)
    for t in range(4):
        for r in range(16):
            A('v_mul_f32', v(vO + 16 * t + r), v(vO + 16 * t + r), inv)
        for a in range(2):
            for i in range(4):
                A('v_cvt_pk_bf16_f32', v(vS + 8 * t + 4 * a + i), v(vO + 16 * t + 8 * a + 2 * i), v(vO + 16 * t + 8 * a + 2 * i + 1))
        A('s_add_u32', s(sTmp), s(sOoff), str(t * 4096))
        for a in range(2):
            A('buffer_store_dwordx4', v(vS + 8 * t + 4 * a, 4), v(vOst), s(sO, 4), s(sTmp), mods=f'offen offset:{a*512}')
    A('s_add_u32', s(sOoff), s(sOoff), str(128 * 4096))
    for r in range(32):
        A('v_mov_b32', v(vQ0 + r), v(vQ1 + r))
    A('s_add_u32', s(sB), s(sB), '1')
    A('s_cmp_lt_u32', s(sB), '2')
    A('s_cbranch_scc1', 'LA_batch')
    A.label('LA_done')
    A('s_endpgm')
    return kn


def kernel_b(A, opt):
    kn = 'oproj_kernel'
    A.raw('.globl %s\n.p2align 8\n.type %s,@function' % (kn, kn))
    A.label(kn)
    sW, sO, sOut = 4, 8, 12
    sWave, sTmp, sTmp2, sP, sBb, sNq = 16, 17, 18, 19, 20, 21
    sWoff, sOoff, sKs, sIt, sM0 = 22, 23, 24, 25, 26
    sWbase, sObase = 27, 28
    sLb = 29
    vTid, vLane = 0, 1
    vt = list(range(2, 8))
    vWa, vOa = 8, 9
    vWd = 10
    vB = 20
    vA = 52
    vAcc = 88
    STG = 9216

    A('s_cmp_ge_u32', 's2', '256')
    A('s_cbranch_scc1', 'LB_done')
    A('s_load_dwordx2', s(32, 2), s(0, 2), '32')
    A('s_load_dwordx2', s(34, 2), s(0, 2), '72')
    A('s_load_dwordx2', s(36, 2), s(0, 2), '80')
    A('s_load_dwordx2', s(38, 2), s(0, 2), '96')
    A('s_and_b32', s(sTmp), 's2', '7')
    A('s_lshr_b32', s(sTmp2), 's2', '3')
    A('s_lshr_b32', s(sP), s(sTmp), '2')
    A('s_and_b32', s(sTmp), s(sTmp), '3')
    A('s_lshl_b32', s(sTmp), s(sTmp), '3')
    A('s_lshr_b32', s(sBb), s(sTmp2), '2')
    A('s_add_u32', s(sBb), s(sBb), s(sTmp))
    A('s_and_b32', s(sNq), s(sTmp2), '3')
    A('v_and_b32', v(vLane), '63', v(vTid))
    A('v_lshrrev_b32', v(vt[0]), '6', v(vTid))
    A('v_readfirstlane_b32', s(sWave), v(vt[0]))
    A.waitcnt(lgkm=0)
    A('s_cmp_eq_u32', s(sP), '0')
    A('s_cselect_b64', s(40, 2), s(32, 2), s(34, 2))
    srd(A, sW, 40, W_BYTES)
    srd(A, sO, 38, O_WS_BYTES)
    srd(A, sOut, 36, OUT_BYTES)
    L = v(vLane)
    t0, t1, t2, t3, t4, t5 = [v(x) for x in vt]
    A('s_movk_i32', s(sTmp), '3641')
    A('s_movk_i32', s(sTmp2), '1152')
    for j in range(9):
        A('v_add_u32', t0, str(64 * j), L)
        A('v_mul_lo_u32', t1, t0, s(sTmp))
        A('v_lshrrev_b32', t1, '16', t1)
        A('v_mul_u32_u24', t2, '18', t1)
        A('v_sub_u32', t2, t0, t2)
        A('v_mul_lo_u32', t1, t1, s(sTmp2))
        A('v_lshl_add_u32', t1, t2, '4', t1)
        A('v_subrev_u32', v(vWd + j), str((j % 4) * 1024), t1)
    A('s_mul_i32', s(sLb), s(sWave), str(2 * STG))
    A('v_bfe_u32', t0, L, '2', '2')
    A('v_bfe_u32', t1, L, '4', '1')
    A('v_lshrrev_b32', t2, '5', L)
    A('v_lshl_add_u32', t0, t1, '2', t0)
    A('v_lshl_add_u32', t0, t2, '4', t0)
    A('v_mul_u32_u24', t0, '288', t0)
    A('v_and_b32', t3, '3', L)
    A('v_lshl_add_u32', t0, t3, '3', t0)
    A('v_add_u32', v(vWa), s(sLb), t0)
    A('v_lshlrev_b32', v(vOa), '4', L)
    A('s_mul_i32', s(sWbase), s(sWave), str(512 * 1152))
    A('s_mul_i32', s(sTmp), s(sNq), '288')
    A('s_add_u32', s(sWbase), s(sWbase), s(sTmp))
    A('s_lshl_b32', s(sObase), s(sP), '5')
    A('s_add_u32', s(sObase), s(sObase), s(sBb))
    A('s_lshl_b32', s(sObase), s(sObase), '7')
    A('s_lshl_b32', s(sTmp), s(sWave), '4')
    A('s_add_u32', s(sObase), s(sObase), s(sTmp))
    A('s_lshl_b32', s(sObase), s(sObase), '12')
    if opt.get('stagger', True):
        A('s_lshr_b32', s(sKs), 's2', '3')
        A('s_lshr_b32', s(sKs), s(sKs), '1')
        A('s_and_b32', s(sKs), s(sKs), '15')
    else:
        A('s_mov_b32', s(sKs), '0')

    def loads(st):
        A('s_mul_i32', s(sWoff), s(sKs), str(32 * 1152))
        A('s_add_u32', s(sWoff), s(sWoff), s(sWbase))
        A('s_lshl_b32', s(sOoff), s(sKs), '12')
        A('s_add_u32', s(sOoff), s(sOoff), s(sObase))
        for qt in range(4):
            A('buffer_load_dwordx4', v(vB + 16 * st + 4 * qt, 4), v(vOa), s(sO, 4), s(sOoff), mods=f'offen offset:{qt*1024}')
        for j in range(9):
            if j % 4 == 0:
                A('s_add_u32', 'm0', s(sLb), str(st * STG + j * 1024))
            A('buffer_load_dwordx4', v(vWd + j), s(sW, 4), s(sWoff), mods=f'offen offset:{(j%4)*1024} lds')
        A('s_add_u32', s(sKs), s(sKs), '1')
        A('s_and_b32', s(sKs), s(sKs), '15')

    loads(0)
    for r in range(144):
        A('v_mov_b32', v(vAcc + r), '0')
    A('s_mov_b32', s(sIt), '0')
    lg = Cnt(A, 'lgkm', 15)
    A.label('LB_loop')
    for st in range(2):
        A.waitcnt(vm=0)
        if st == 1:
            A('s_cmp_eq_u32', s(sIt), '7')
            A('s_cbranch_scc1', 'LB_nopf')
        loads(1 - st)
        if st == 1:
            A.label('LB_nopf')
        def aread(tn):
            for e in range(2):
                A('ds_read_b64_tr_b16', v(vA + 4 * tn + 2 * e, 2), v(vWa), mods=f'offset:{st * STG + e * 8 * 288 + 32 * tn}')
                lg.issue(('A', tn))
        for tn in range(4):
            aread(tn)
        for tn in range(9):
            lg.wait(('A', tn))
            for qt in range(4):
                acc = v(vAcc + (tn * 4 + qt) * 4, 4)
                A('v_mfma_f32_16x16x32_bf16', acc, v(vA + 4 * tn, 4), v(vB + 16 * st + 4 * qt, 4), acc)
                if qt == 0 and tn + 4 < 9:
                    aread(tn + 4)
        assert not lg.p
    A('s_add_u32', s(sIt), s(sIt), '1')
    A('s_cmp_lt_u32', s(sIt), '8')
    A('s_cbranch_scc1', 'LB_loop')
    A('s_barrier')
    A('s_mul_i32', s(sTmp), s(sWave), str(18 * 1024))
    A('v_lshlrev_b32', t0, '4', L)
    A('v_add_u32', t0, s(sTmp), t0)
    A('v_lshlrev_b32', t1, '4', v(vTid))
    A('v_and_b32', t2, '15', L)
    A('s_movk_i32', s(sTmp), '2304')
    A('v_mul_lo_u32', t2, t2, s(sTmp))
    A('v_lshrrev_b32', t3, '4', L)
    A('v_lshl_add_u32', t2, t3, '3', t2)
    sOutB = 30
    A('s_lshl_b32', s(sOutB), s(sBb), '6')
    A('s_mul_i32', s(sOutB), s(sOutB), '2304')
    A('s_mul_i32', s(sTmp), s(sP), '1152')
    A('s_add_u32', s(sOutB), s(sOutB), s(sTmp))
    A('s_mul_i32', s(sTmp), s(sNq), '288')
    A('s_add_u32', s(sOutB), s(sOutB), s(sTmp))
    for rnd in range(2):
        for tl in range(18):
            A('ds_write_b128', t0, v(vAcc + (rnd * 18 + tl) * 4, 4), mods=f'offset:{tl*1024}')
        A.waitcnt(lgkm=0)
        A('s_barrier')
        for i in range(3):
            lab = f'LB_skip{rnd}'
            if i == 2:
                A('s_cmp_ge_u32', s(sWave), '2')
                A('s_cbranch_scc1', lab)
            for w in range(8):
                off = w * 18 * 1024 + i * 8192
                if off < 65536:
                    A('ds_read_b128', v(vB + 4 * w, 4), t1, mods=f'offset:{off}')
                else:
                    if w == 4 or (w == 3 and off >= 65536):
                        pass
                    A('v_add_u32', t4, str(off), t1)
                    A('ds_read_b128', v(vB + 4 * w, 4), t4)
            A.waitcnt(lgkm=0)
            for w in range(1, 8):
                for r in range(4):
                    A('v_add_f32', v(vB + r), v(vB + r), v(vB + 4 * w + r))
            A('v_cvt_pk_bf16_f32', v(vA), v(vB), v(vB + 1))
            A('v_cvt_pk_bf16_f32', v(vA + 1), v(vB + 2), v(vB + 3))
            A('s_add_u32', s(sTmp), s(sWave), str(rnd * 18 + 8 * i))
            A('s_lshr_b32', s(sTmp2), s(sTmp), '2')
            A('s_lshl_b32', s(sTmp2), s(sTmp2), '5')
            A('s_and_b32', s(sTmp), s(sTmp), '3')
            A('s_mul_i32', s(sTmp), s(sTmp), str(16 * 2304))
            A('s_add_u32', s(sTmp), s(sTmp), s(sTmp2))
            A('s_add_u32', s(sTmp), s(sTmp), s(sOutB))
            A('buffer_store_dwordx2', v(vA, 2), t2, s(sOut, 4), s(sTmp), mods='offen')
            if i == 2:
                A.label(lab)
        if rnd == 0:
            A('s_barrier')
    A.label('LB_done')
    A('s_endpgm')
    return kn


def kd(name, vgpr, sgpr):
    return f'''.amdhsa_kernel {name}
  .amdhsa_next_free_vgpr {vgpr}
  .amdhsa_next_free_sgpr {sgpr}
  .amdhsa_accum_offset {vgpr}
  .amdhsa_group_segment_fixed_size 0
  .amdhsa_kernarg_size 104
  .amdhsa_user_sgpr_count 2
  .amdhsa_user_sgpr_kernarg_segment_ptr 1
  .amdhsa_system_sgpr_workgroup_id_x 1
.end_amdhsa_kernel
'''

def generate(opt):
    A = Asm()
    ka = kernel_a(A, opt)
    kb = kernel_b(A, opt)
    errs = A.check_branches()
    for e in errs:
        print('HAZARD:', e, file=sys.stderr)
    assert not errs
    hdr = [l for l in HDR if l.startswith(';') and '@launch' not in l]
    out = '\n'.join(hdr) + '\n'
    out += f'; @launch kernel={ka} grid=(512,1,1) block=(256,1,1) lds=81920\n'
    out += f'; @launch kernel={kb} grid=(256,1,1) block=(512,1,1) lds=147456\n'
    out += '.amdgcn_target "amdgcn-amd-amdhsa--gfx950"\n.text\n'
    out += A.text()
    out += '.section .rodata,"a"\n.p2align 6\n'
    out += kd(ka, 256, 96)
    out += '.p2align 6\n'
    out += kd(kb, 256, 96)
    return out

if __name__ == '__main__':
    opt = {}
    for a in sys.argv[2:]:
        k, val = a.split('=')
        opt[k] = eval(val)
    txt = generate(opt)
    open(sys.argv[1], 'w').write(txt)
    print('wrote', sys.argv[1], len(txt))
```

```python
import sys, math, struct
sys.path.insert(0, 'gen')
from asmlib import *

NAME = 'concat_heads__gqa_block_cached__gqa_block_cached__near_ridge'
HDR = open('cdna_kernels/' + NAME + '.s.ref').read().split('\n')

X_BYTES = 32 * 64 * 576 * 2
KV_BYTES = 32 * 16 * 512 * 128 * 2
W_BYTES = 576 * 4096 * 2
OUT_BYTES = 32 * 64 * 1152 * 2
PART = 64 * 576 * 2
WS_BYTES = 64 * 8 * PART
OOB = '0x7f000000'

def f32(x):
    return hex(int.from_bytes(struct.pack('<f', x), 'little'))

class Cnt:
    def __init__(self, A, maxn=15):
        self.A = A; self.p = []; self.maxn = maxn
    def issue(self, tag):
        self.p.append(tag)
        assert len(self.p) <= self.maxn, len(self.p)
    def wait(self, tag):
        idx = None
        for k, t in enumerate(self.p):
            if t == tag:
                idx = k
        if idx is None:
            return
        self.A.waitcnt(lgkm=len(self.p) - idx - 1)
        self.p = self.p[idx + 1:]

def srd(A, d, plo, nbytes):
    A('s_mov_b32', s(d), s(plo))
    A('s_and_b32', s(d + 1), s(plo + 1), '0xffff')
    A('s_mov_b32', s(d + 2), hex(nbytes))
    A('s_mov_b32', s(d + 3), '0x00020000')

sX, sK, sV, sWq, sWo, sWS = 4, 8, 12, 16, 20, 24
sWave, sTeam, sTmp, sTmp2, sType, sC, sThr = 28, 29, 30, 31, 32, 33, 34
sR, sIt, sT, sKVoff, sKVbase, sM0KV = 35, 36, 37, 38, 39, 40
sWbase, sXbase, sWoff, sXoff, sCk, sXk = 41, 42, 43, 44, 45, 46
sG, sB, sP, sW3 = 47, 48, 49, 50
sM0W, sM0X, sWoBase, sPoff, sFlagZ, sFlagS = 51, 52, 53, 54, 55, 56
sRet = 58
sM0O = 60
sLd = 70
sStamp = 72
vTid, vLane = 0, 1
vA0 = 4
vQ0, vQ1 = 32, 64
vKd, vVd = 27, 31
sKoff, sVoff, sKn, sVn, sPre, sNext, sJump = 38, 57, 37, 63, 64, 65, 66
vW = 96


def fused_kernel(A, opt):
    kn = 'fused_kernel'
    A.raw('.globl %s\n.p2align 8\n.type %s,@function' % (kn, kn))
    A.label(kn)
    L = v(vLane)
    nst = [0]
    def stamp():
        if opt.get('stamp'):
            A('s_memrealtime', s(sStamp + 2 * nst[0], 2))
            A.waitcnt(lgkm=0)
            nst[0] += 1

    A('s_cmp_ge_u32', 's2', '256')
    A('s_cbranch_scc1', 'LF_done')
    A('s_load_dwordx8', s(72, 8), s(0, 2), '0')
    A('s_load_dwordx2', s(80, 2), s(0, 2), '32')
    A('s_load_dwordx8', s(84, 8), s(0, 2), '40')
    A('s_load_dwordx2', s(92, 2), s(0, 2), '72')
    A('s_load_dwordx2', s(94, 2), s(0, 2), '96')
    A('s_and_b32', s(sTmp), 's2', '7')
    A('s_lshr_b32', s(sP), s(sTmp), '2')
    A('s_and_b32', s(sG), s(sTmp), '3')
    A('s_lshr_b32', s(sB), 's2', '3')
    A('s_add_u32', s(sType), s(sB), s(sG))
    A('s_and_b32', s(sType), s(sType), '1')
    A('v_and_b32', L, '63', v(vTid))
    A('v_lshrrev_b32', v(2), '6', v(vTid))
    A('v_readfirstlane_b32', s(sWave), v(2))
    A('s_lshr_b32', s(sTeam), s(sWave), '2')
    A('s_and_b32', s(sW3), s(sWave), '3')
    A('s_mov_b32', s(sC), f32((128 ** -0.5) * math.log2(math.e)))
    A('s_mov_b32', s(sThr), f32(8.0 / ((128 ** -0.5) * math.log2(math.e))))
    A.waitcnt(lgkm=0)
    A('s_cmp_eq_u32', s(sP), '0')
    for k in range(4):
        A('s_cselect_b64', s(72 + 2 * k, 2), s(72 + 2 * k, 2), s(84 + 2 * k, 2))
    A('s_cselect_b64', s(80, 2), s(80, 2), s(92, 2))
    srd(A, sX, 72, X_BYTES)
    srd(A, sK, 74, KV_BYTES)
    srd(A, sV, 76, KV_BYTES)
    srd(A, sWq, 78, W_BYTES)
    srd(A, sWo, 80, W_BYTES)
    srd(A, sWS, 94, (0x10000000 if opt.get('stamp') else WS_BYTES))
    A('s_lshl_b32', s(sKVbase), s(sB), '4')
    A('s_lshl_b32', s(sTmp), s(sG), '2')
    A('s_add_u32', s(sKVbase), s(sKVbase), s(sTmp))
    A('s_add_u32', s(sKVbase), s(sKVbase), s(sTeam))
    A('s_lshl_b32', s(sKVbase), s(sKVbase), '17')
    A('s_lshl_b32', s(sTmp), s(sW3), '12')
    A('s_add_u32', s(sKVbase), s(sKVbase), s(sTmp))
    A('s_lshl_b32', s(sM0KV), s(sTeam), '16')
    A('s_add_u32', s(sM0KV), s(sM0KV), s(sTmp))
    A('s_lshl_b32', s(sM0W), s(sWave), '12')
    A('s_lshl_b32', s(sM0X), s(sWave), '10')
    A('s_lshl_b32', s(sXbase), s(sB), '6')
    A('s_lshl_b32', s(sTmp), s(sWave), '3')
    A('s_add_u32', s(sXbase), s(sXbase), s(sTmp))
    A('s_mulk_i32', s(sXbase), '1152')
    A('s_lshl_b32', s(sPoff), s(sP), '5')
    A('s_add_u32', s(sPoff), s(sPoff), s(sB))
    A('s_lshl_b32', s(sPoff), s(sPoff), '2')
    A('s_add_u32', s(sPoff), s(sPoff), s(sG))
    A('s_mul_i32', s(sPoff), s(sPoff), str(2 * PART))
    A('s_mul_i32', s(sTmp), s(sWave), '9216')
    A('s_add_u32', s(sPoff), s(sPoff), s(sTmp))
    A('v_lshrrev_b32', v(4), '4', L)
    A('v_and_b32', v(5), '15', L)
    for jj in range(4):
        A('v_add_u32', v(6), str(4 * jj), v(4))
        A('v_xor_b32', v(6), v(6), v(5))
        A('v_lshlrev_b32', v(6), '4', v(6))
        A('v_lshl_add_u32', v(vKd + jj), v(4), '8', v(6))
    A('v_lshlrev_b32', v(6), '2', v(4))
    A('v_xor_b32', v(6), v(6), v(5))
    A('v_lshlrev_b32', v(6), '4', v(6))
    A('v_lshl_add_u32', v(vVd), v(4), '8', v(6))
    stamp()

    def kvinit(r):
        A('s_add_u32', s(sKoff), s(sKVbase), str(r << 18))
        if opt.get('kv_oob'): A('s_mov_b32', s(sKoff), '0x70000000')
        A('s_mov_b32', s(sVoff), s(sKoff))
        A('s_mov_b32', s(sKn), '0')
        A('s_mov_b32', s(sVn), '0')
    def call(lbl):
        A('s_call_b64', s(sRet, 2), lbl)
        A('s_nop', '7'); A('s_nop', '7')
    def setr(r):
        A('s_mov_b32', s(sR), str(r))
    def mov32(dst, src):
        for i in range(32):
            A('v_mov_b32', v(dst + i), v(src + i))
    def swap32():
        for i in range(32):
            A('v_swap_b32', v(vQ0 + i), v(vQ1 + i))

    force = opt.get('force_type')
    if force is not None:
        A('s_mov_b32', s(sTmp), str(force))
        A('s_cmp_eq_u32', s(sTmp), '0')
    else:
        A('s_cmp_eq_u32', s(sType), '0')
    A('s_cbranch_scc0', 'LF_G2')
    for r in range(2):
        setr(r); kvinit(r)
        A('s_mov_b32', s(sPre), '1'); A('s_mov_b32', s(sNext), '0'); A('s_mov_b32', s(sJump), '0x40000000')
        call('LF_Q'); stamp()
        call('LF_S'); stamp()
        A('s_mov_b32', s(sFlagZ), '1'); A('s_mov_b32', s(sFlagS), '1')
        call('LF_O'); stamp()
        A('s_add_u32', s(sPoff), s(sPoff), str(PART))
    A('s_branch', 'LF_end')
    A.label('LF_G2')
    n_save = nst[0]; nst[0] = 1
    setr(1); A('s_mov_b32', s(sPre), '0'); call('LF_Q'); stamp()
    mov32(vQ1, vQ0)
    setr(0); kvinit(0)
    A('s_mov_b32', s(sPre), '1'); A('s_mov_b32', s(sNext), '1'); A('s_mov_b32', s(sJump), '0x20000')
    call('LF_Q'); stamp()
    call('LF_S'); stamp()
    swap32()
    setr(1)
    A('s_mov_b32', s(sPre), '3'); A('s_mov_b32', s(sNext), '0'); A('s_mov_b32', s(sJump), '0x40000000')
    call('LF_S'); stamp()
    A('s_mov_b32', s(sFlagZ), '1'); A('s_mov_b32', s(sFlagS), '0')
    call('LF_O'); stamp()
    mov32(vQ0, vQ1)
    setr(0)
    A('s_mov_b32', s(sFlagZ), '0'); A('s_mov_b32', s(sFlagS), '1')
    call('LF_O'); stamp()
    A.label('LF_end')
    if opt.get('stamp'):
        A('s_lshl_b32', s(sTmp), 's2', '3')
        A('s_add_u32', s(sTmp), s(sTmp), s(sWave))
        A('s_lshl_b32', s(sTmp), s(sTmp), '6')
        A('s_add_u32', s(sTmp), s(sTmp), hex(200 << 20))
        A('v_mov_b32', v(6), '0')
        A('s_mov_b64', 'exec', '1')
        for i in range(7):
            A('v_mov_b32', v(4), s(sStamp + 2 * i))
            A('v_mov_b32', v(5), s(sStamp + 2 * i + 1))
            A('buffer_store_dwordx2', v(4, 2), v(6), s(sWS, 4), s(sTmp), mods=f'offen offset:{8*i}')
            A.waitcnt(vm=0)
    A.label('LF_done')
    A('s_endpgm')

    phase_q(A, opt)
    phase_s(A, opt)
    phase_o(A, opt)
    return kn


def kv_parts(A, opt, slot):
    kvflags = opt.get('kvflags', 'nt')
    parts = []
    isk = slot % 2 == 0
    so, sn = (sKoff, sKn) if isk else (sVoff, sVn)
    for jj in range(4):
        def f(jj=jj):
            A('s_add_u32', 'm0', s(sM0KV), str(slot * 16384))
            if isk:
                A('buffer_load_dwordx4', v(vKd + jj), s(sK, 4), s(so), mods=f'offen offset:{jj*1024} {kvflags} lds')
            else:
                A('buffer_load_dwordx4', v(vVd), s(sV, 4), s(so), mods=f'offen offset:{jj*1024} {kvflags} lds')
            if jj == 3:
                A('s_add_u32', s(sn), s(sn), '1')
                A('s_add_u32', s(so), s(so), '0x4000')
                A('s_and_b32', s(sTmp2), s(sn), '7')
                A('s_cselect_b32', s(sTmp), '0', s(sJump))
                A('s_add_u32', s(so), s(so), s(sTmp))
        parts.append(f)
    return parts


def ret(A):
    A('s_nop', '7'); A('s_nop', '7')
    A('s_setpc_b64', s(sRet, 2))


def phase_q(A, opt):
    L = v(vLane)
    vWd, vWa, vXd, vXa = 4, 8, 12, 13
    t0, t1, t2, t3, t4, t5 = [v(x) for x in range(21, 27)]
    vAcc, vFA, vFB = vW, vW + 64, vW + 96
    WST = [98304, 16384, 131072]
    XSL = [49152, 57344, 81920]
    A.label('LF_Q')
    for jj in range(4):
        A('v_xor_b32', t0, str(4 * jj), L)
        A('v_lshlrev_b32', t0, '4', t0)
        A('v_add_u32', v(vWd + jj), str(jj * (8192 - 1024)), t0)
    A('s_and_b32', s(sTmp), s(sWave), '1')
    A('s_lshl_b32', s(sTmp), s(sTmp), '2')
    A('v_lshrrev_b32', t0, '4', L)
    A('v_add_u32', t0, s(sTmp), t0)
    A('v_and_b32', t1, '7', L)
    A('v_xor_b32', t0, t0, t1)
    A('v_lshlrev_b32', t0, '4', t0)
    A('v_lshrrev_b32', t1, '3', L)
    A('v_mul_u32_u24', t1, '1152', t1)
    A('v_add_u32', v(vXd), t0, t1)
    A('s_lshl_b32', s(sWbase), s(sG), '1')
    A('s_add_u32', s(sWbase), s(sWbase), s(sR))
    A('s_lshl_b32', s(sWbase), s(sWbase), '10')
    A('s_lshl_b32', s(sTmp), s(sWave), '15')
    A('s_add_u32', s(sWbase), s(sWbase), s(sTmp))
    A('s_mul_i32', s(sTmp), s(sB), '57')
    A('s_lshr_b32', s(sTmp), s(sTmp), '9')
    A('s_mul_i32', s(sTmp), s(sTmp), '9')
    A('s_sub_u32', s(sXk), s(sB), s(sTmp))
    A('s_lshl_b32', s(sCk), s(sXk), '1')

    def w_parts(st):
        parts = []
        for jj in range(4):
            def f(jj=jj):
                if jj == 0:
                    A('s_lshl_b32', s(sWoff), s(sCk), '18')
                    A('s_add_u32', s(sWoff), s(sWoff), s(sWbase))
                    A('s_add_u32', s(sCk), s(sCk), '1')
                    A('s_cmp_eq_u32', s(sCk), '18')
                    A('s_cselect_b32', s(sCk), '0', s(sCk))
                A('s_add_u32', 'm0', s(sM0W), str(WST[st]))
                A('buffer_load_dwordx4', v(vWd + jj), s(sWq, 4), s(sWoff), mods=f'offen offset:{jj*1024} lds')
            parts.append(f)
        return parts
    def x_part(sl):
        def f():
            A('s_lshl_b32', s(sXoff), s(sXk), '7')
            A('s_add_u32', s(sXoff), s(sXoff), s(sXbase))
            A('s_add_u32', s(sXk), s(sXk), '1')
            A('s_cmp_eq_u32', s(sXk), '9')
            A('s_cselect_b32', s(sXk), '0', s(sXk))
            A('s_add_u32', 'm0', s(sM0X), str(XSL[sl]))
            A('buffer_load_dwordx4', v(vXd), s(sX, 4), s(sXoff), mods='offen lds')
        return [f]
    A('s_barrier')
    for d in x_part(0) + w_parts(0):
        d()
    A('v_bfe_u32', t0, L, '2', '2')
    A('v_lshrrev_b32', t1, '5', L)
    A('v_and_b32', t2, '1', L)
    A('v_bfe_u32', t3, L, '1', '1')
    A('v_lshl_add_u32', t2, t2, '1', t3)
    A('v_bfe_u32', t3, L, '4', '1')
    A('v_lshl_add_u32', t4, t1, '3', t0)
    A('v_lshlrev_b32', t4, '10', t4)
    A('v_lshl_add_u32', t4, t3, '5', t4)
    A('v_lshl_add_u32', t4, t2, '3', t4)
    A('s_lshr_b32', s(sTmp), s(sWave), '1')
    A('s_lshl_b32', s(sTmp), s(sTmp), '8')
    A('v_add_u32', t4, s(sTmp), t4)
    for t in range(4):
        A('v_xor_b32', t5, str(t), t0)
        A('v_lshl_add_u32', v(vWa + t), t5, '6', t4)
    vWa2 = 17
    for t in range(4):
        A('v_add_u32', v(vWa2 + t), '0x18000', v(vWa + t))
    A('v_and_b32', t0, '31', L)
    A('s_and_b32', s(sTmp), s(sWave), '1')
    A('s_lshl_b32', s(sTmp), s(sTmp), '5')
    A('v_add_u32', t0, s(sTmp), t0)
    A('v_bfe_u32', t2, L, '1', '3')
    A('v_xor_b32', t2, t2, t1)
    for s4 in range(4):
        A('v_xor_b32', t3, str(2 * s4), t2)
        A('v_lshlrev_b32', t3, '4', t3)
        A('v_lshl_add_u32', v(vXa + s4), t0, '7', t3)
        A('v_add_u32', v(vXa + s4), '49152', v(vXa + s4))
    for r in range(64):
        A('v_mov_b32', v(vAcc + r), '0')

    lg = Cnt(A)
    def reads(kk, part):
        c, sidx = (kk >> 1) % 3, kk & 1
        X, s4 = (kk >> 2) % 3, kk & 3
        par = kk & 1
        base = WST[c]
        if part == 'B':
            A('ds_read_b128', v(vFB + 4 * par, 4), v(vXa + s4), mods=f'offset:{XSL[X] - 49152}')
            lg.issue(('B', par))
        else:
            t = part
            for e in range(2):
                off = base + (16 * sidx + 4 * e) * 1024
                if base >= 98304:
                    A('ds_read_b64_tr_b16', v(vFA + 16 * par + 4 * t + 2 * e, 2), v(vWa2 + t), mods=f'offset:{off - 98304}')
                else:
                    A('ds_read_b64_tr_b16', v(vFA + 16 * par + 4 * t + 2 * e, 2), v(vWa + t), mods=f'offset:{off}')
                lg.issue(('A', par, t))
    def kstep(kk, nxt, sync, dma):
        par = kk & 1
        if sync is not None:
            A.waitcnt(vm=sync, lgkm=0); lg.p = []
            A('s_barrier')
        dma = list(dma)
        for t in range(4):
            lg.wait(('A', par, t)); lg.wait(('B', par))
            acc = v(vAcc + 16 * t, 16)
            A('v_mfma_f32_32x32x16_bf16', acc, v(vFA + 16 * par + 4 * t, 4), v(vFB + 4 * par, 4), acc)
            if nxt:
                if t == 0: reads(kk + 1, 'B'); reads(kk + 1, 0)
                elif t == 1: reads(kk + 1, 1); reads(kk + 1, 2)
                elif t == 2: reads(kk + 1, 3)
            if dma and t != 0:
                dma.pop(0)()
        return dma

    for d in w_parts(1) + x_part(1):
        d()
    A.waitcnt(vm=5)
    A('s_barrier')
    reads(0, 'B')
    for t in range(4): reads(0, t)
    for d in w_parts(2):
        d()
    saved = list(lg.p)
    A('s_mov_b32', s(sIt), '0')
    def window(last):
        carry = []
        for c in range(6):
            carry = kstep(2 * c, True, None, carry)
            assert not carry
            if last and c >= 3:
                vm = {3: 4, 4: 0, 5: None}[c]
                if c == 5:
                    kstep(2 * c + 1, False, None, [])
                else:
                    kstep(2 * c + 1, True, vm, [])
                    if c == 4:
                        A('s_cmp_eq_u32', s(sPre), '0')
                        A('s_cbranch_scc1', 'LF_Q_nopre')
                        for d in kv_parts(A, opt, 0): d()
                        A.label('LF_Q_nopre')
                continue
            vm = 4 if c % 2 == 0 else 5
            newp = w_parts(c % 3)
            if c % 2 == 0 and not (last and c == 2):
                newp = newp + x_part(((c >> 1) + 2) % 3)
            carry = kstep(2 * c + 1, True, vm, newp)
        return carry
    A.label('LF_Qloop')
    carry = window(False)
    for d in carry: d()
    assert lg.p == saved, (lg.p, saved)
    A('s_add_u32', s(sIt), s(sIt), '1')
    A('s_cmp_lt_u32', s(sIt), '2')
    A('s_cbranch_scc1', 'LF_Qloop')
    window(True)
    assert not lg.p
    for t in range(4):
        for hf in range(2):
            for i in range(4):
                a = vAcc + t * 16 + 8 * hf + 2 * i
                A('v_cvt_pk_bf16_f32', v(vQ0 + 4 * (2 * t + hf) + i), v(a), v(a + 1))
    ret(A)


def phase_s(A, opt):
    L = v(vLane)
    vKa, vVa, vM, vL = 4, 12, 16, 17
    vt = list(range(18, 26))
    t0, t1, t2, t3, t4, t5 = [v(x) for x in vt[:6]]
    vO, vS, vP, vF = vW, vW + 64, vW + 96, vW + 112
    A.label('LF_S')
    A('s_barrier')
    def dma_parts(slot):
        return kv_parts(A, opt, slot)
    A('s_cmp_eq_u32', s(sPre), '3')
    A('s_cbranch_scc1', 'LF_S_pre3')
    for sl in range(1, 3):
        for d in dma_parts(sl): d()
    A.label('LF_S_pre3')
    if opt.get('wotouch', True):
        A('s_lshl_b32', s(sTmp), s(sG), '1')
        A('s_add_u32', s(sTmp), s(sTmp), s(sR))
        A('s_mul_i32', s(sTmp), s(sTmp), str(512 * 1152))
        A('s_lshr_b32', s(sTmp2), s(sB), '1')
        A('s_lshl_b32', s(sTmp2), s(sTmp2), '3')
        A('s_add_u32', s(sTmp2), s(sTmp2), s(sWave))
        A('s_mul_i32', s(sTmp2), s(sTmp2), '4608')
        A('s_add_u32', s(sTmp), s(sTmp), s(sTmp2))
        A('v_min_u32', t0, '35', L)
        A('v_lshlrev_b32', t0, '7', t0)
        A('buffer_load_dword', v(26), t0, s(sWo, 4), s(sTmp), mods='offen')
    A('s_lshl_b32', s(sTmp), s(sTeam), '16')
    A('v_and_b32', t0, '31', L)
    A('v_lshrrev_b32', t1, '5', L)
    A('v_and_b32', t2, '15', L)
    A('v_xor_b32', t2, t2, t1)
    A('v_lshlrev_b32', t0, '8', t0)
    A('v_add_u32', t0, s(sTmp), t0)
    for sidx in range(8):
        A('v_xor_b32', t3, str(2 * sidx), t2)
        A('v_lshl_add_u32', v(vKa + sidx), t3, '4', t0)
    A('v_bfe_u32', t0, L, '2', '2')
    A('v_and_b32', t2, '3', L)
    A('v_bfe_u32', t3, L, '4', '1')
    A('v_lshl_add_u32', t4, t1, '2', t0)
    A('v_lshlrev_b32', t4, '8', t4)
    A('v_lshl_add_u32', t4, t3, '5', t4)
    A('v_lshl_add_u32', t4, t2, '3', t4)
    A('v_add_u32', t4, s(sTmp), t4)
    for t in range(4):
        A('v_xor_b32', t5, str(t), t0)
        A('v_lshl_add_u32', v(vVa + t), t5, '6', t4)
    for r in range(64):
        A('v_mov_b32', v(vO + r), '0')
    A('v_mov_b32', v(vM), '0xff800000')
    A('v_mov_b32', v(vL), '0')
    A('s_mov_b32', s(sIt), '0')

    lg = Cnt(A)
    KBUF = [0, 32768]; VBUF = [16384, 49152]
    def kread(par, k):
        u, sidx = k >> 3, k & 7
        A('ds_read_b128', v(vF + 4 * (k % 8), 4), v(vKa + sidx), mods=f'offset:{KBUF[par] + u * 8192}')
        lg.issue(('K', k))
    def vslot(k):
        return (8 + k) % 12
    def vread(par, k):
        e, t = k >> 2, k & 3
        for h2 in range(2):
            A('ds_read_b64_tr_b16', v(vF + 4 * vslot(k) + 2 * h2, 2), v(vVa + t), mods=f'offset:{VBUF[par] + (16 * e + 8 * h2) * 256}')
            lg.issue(('V', k))

    A.waitcnt(vm=9 if opt.get('wotouch', True) else 8)
    A('s_barrier')
    A('s_cmp_eq_u32', s(sTeam), '0')
    A('s_cbranch_scc1', 'LF_S_nst')
    A('s_barrier')
    A.label('LF_S_nst')
    for k in range(4):
        kread(0, k)
    saved = list(lg.p)
    rare = []

    def tile_loop(team):
        carry = []
        A.label(f'LF_Sloop{team}')
        for par in range(2):
            kslot, vsl = 2 * par, 2 * par + 1
            mx = v(vt[0]); mx2 = v(vt[1])
            def max_items(u, first):
                it = []
                base = vS + 16 * u
                if first:
                    it.append(lambda: A('v_max3_f32', mx, v(base), v(base + 1), v(base + 2)))
                    rest = list(range(3, 16))
                else:
                    rest = list(range(0, 16))
                while len(rest) >= 2:
                    a, b = rest[0], rest[1]; rest = rest[2:]
                    it.append(lambda a=a, b=b: A('v_max3_f32', mx, mx, v(base + a), v(base + b)))
                if rest:
                    a = rest[0]
                    it.append(lambda a=a: A('v_max_f32', mx, mx, v(base + a)))
                return it
            m0items = max_items(0, True)
            dq = dma_parts(2 * (1 - par) + 1)
            kread(par, 4); kread(par, 5)
            for k in range(16):
                u, sidx = k >> 3, k & 7
                lg.wait(('K', k))
                if k == 12:
                    lg.wait(('K', 15))
                    A.waitcnt(vm=8)
                    A('s_barrier')
                    if opt.get('sprio', 1): A('s_setprio', str(opt.get('sprio', 1)))
                    assert not dq
                    dq = dma_parts(kslot)
                acc = v(vS + 16 * u, 16)
                A('v_mfma_f32_32x32x16_bf16', acc, v(vF + 4 * (k % 8), 4), v(vQ0 + 4 * sidx, 4), '0' if sidx == 0 else acc)
                if k + 6 < 16:
                    kread(par, k + 6)
                if k >= 12:
                    vread(par, k - 12)
                if k in (1, 3, 5, 7, 14):
                    dq.pop(0)()
                if k >= 11 and m0items:
                    m0items.pop(0)()
                    if m0items: m0items.pop(0)()
            for it in m0items:
                it()
            vread(par, 4); vread(par, 5)
            for it in max_items(1, False):
                it()
            A('v_mov_b32', mx2, mx)
            A('v_permlane32_swap_b32', mx, mx2)
            mc = v(vt[4]); dd = v(vt[5])
            A('v_max_f32', mx, mx, mx2)
            A('v_sub_f32', dd, mx, v(vM))
            A('v_cmp_lt_f32', 'vcc', s(sThr), dd)
            lr, lb = f'LF_rare{team}{par}', f'LF_back{team}{par}'
            A('s_cbranch_vccnz', lr)
            A.label(lb)
            rare.append((lr, lb))
            def p_items(e):
                it = []
                base = vS + 8 * e
                for r in range(8):
                    it.append(lambda r=r: A('v_fma_f32', v(base + r), v(base + r), s(sC), '-' + mc))
                for r in range(8):
                    it.append(lambda r=r: A('v_exp_f32', v(base + r), v(base + r)))
                for i in range(4):
                    it.append(lambda i=i: A('v_cvt_pk_bf16_f32', v(vP + 4 * e + i), v(base + 2 * i), v(base + 2 * i + 1)))
                for r in range(8):
                    it.append(lambda r=r: A('v_add_f32', v(vL), v(vL), v(base + r)))
                return it
            for it in p_items(0)[:20]:
                it()
            nxt = 6
            for k in range(16):
                e, t = k >> 2, k & 3
                lg.wait(('V', k))
                if k == 12:
                    lg.wait(('V', 15))
                    A.waitcnt(vm=8)
                    A('s_barrier')
                    if opt.get('sprio', 1): A('s_setprio', '0')
                acc = v(vO + 16 * t, 16)
                A('v_mfma_f32_32x32x16_bf16', acc, v(vF + 4 * vslot(k), 4), v(vP + 4 * e, 4), acc)
                if nxt < 16:
                    vread(par, nxt); nxt += 1
                if k in (1, 4, 7):
                    dq.pop(0)()
                if k >= 12:
                    kread(1 - par, k - 12)
                if e < 3:
                    items = p_items(e + 1)[:20]
                    for it in items[5 * t:5 * t + 5]: it()
                    extra = p_items(e)[20:]
                    for it in extra[2 * t:2 * t + 2]: it()
                else:
                    extra = p_items(3)[20:]
                    for it in extra[2 * t:2 * t + 2]: it()
            assert not dq
            assert lg.p == saved, (lg.p, saved)
        A('s_add_u32', s(sIt), s(sIt), '1')
        A('s_cmp_lt_u32', s(sIt), '4')
        A('s_cbranch_scc1', f'LF_Sloop{team}')
    tile_loop(0)
    A('s_cmp_lg_u32', s(sTeam), '0')
    A('s_cbranch_scc1', 'LF_S_nst2')
    A('s_barrier')
    A.label('LF_S_nst2')
    l2 = v(vt[0]); inv = v(vt[1])
    A('v_mov_b32', l2, v(vL))
    A('v_permlane32_swap_b32', v(vL), l2)
    A('v_add_f32', l2, l2, v(vL))
    A('v_rcp_f32', inv, l2)
    for t in range(4):
        for r in range(16):
            A('v_mul_f32', v(vO + 16 * t + r), v(vO + 16 * t + r), inv)
        for a in range(2):
            for i, r0 in enumerate((4 * a, 4 * a + 2, 8 + 4 * a, 8 + 4 * a + 2)):
                A('v_cvt_pk_bf16_f32', v(vQ0 + 8 * t + 4 * a + i), v(vO + 16 * t + r0), v(vO + 16 * t + r0 + 1))
    A.waitcnt(lgkm=0)
    A('s_cmp_lg_u32', s(sNext), '0')
    A('s_cbranch_scc1', 'LF_S_nowait')
    A.waitcnt(vm=0)
    A.label('LF_S_nowait')
    ret(A)
    for lr, lb in rare:
        mx = v(vt[0]); mnew = v(vt[2]); alpha = v(vt[3]); mc = v(vt[4])
        A.label(lr)
        A('v_max_f32', mnew, mx, v(vM))
        A('v_sub_f32', alpha, v(vM), mnew)
        A('v_mul_f32', alpha, s(sC), alpha)
        A('v_exp_f32', alpha, alpha)
        A('v_mul_f32', mc, s(sC), mnew)
        A('v_mov_b32', v(vM), mnew)
        A('v_mul_f32', v(vL), v(vL), alpha)
        for r in range(64):
            A('v_mul_f32', v(vO + r), v(vO + r), alpha)
        A('s_branch', lb)


def phase_o(A, opt):
    L = v(vLane)
    vOd, vOa, vOb, vOw, vRa, vRb = 4, 9, 13, 14, 15, 19
    t0, t1, t2, t3, t4, t5 = [v(x) for x in range(20, 26)]
    vAcc, vFA, vFB = vW, vW + 72, vW + 144
    STG = 36864
    OT = 3 * STG
    sStR, sStW, sBoff = sM0O, sM0O + 1, sM0O + 2
    A.label('LF_O')
    A('s_lshl_b32', s(sTmp), s(sWave), '6')
    A('s_mov_b32', s(sTmp2), '3641')
    for i in range(5):
        A('v_add_u32', t0, s(sTmp), L)
        if i:
            A('v_add_u32', t0, str(512 * i), t0)
        A('v_mul_lo_u32', t1, t0, s(sTmp2))
        A('v_lshrrev_b32', t1, '18', t1)
        A('v_mul_u32_u24', t2, '72', t1)
        A('v_sub_u32', t2, t0, t2)
        A('v_bfe_u32', t3, t1, '1', '2')
        A('v_lshlrev_b32', t3, '1', t3)
        A('v_xor_b32', t2, t2, t3)
        A('v_mul_u32_u24', t1, '1152', t1)
        A('v_lshl_add_u32', v(vOd + i), t2, '4', t1)
    A('s_lshl_b32', s(sWoBase), s(sG), '1')
    A('s_add_u32', s(sWoBase), s(sWoBase), s(sR))
    A('s_mul_i32', s(sWoBase), s(sWoBase), str(512 * 1152))
    A('s_mov_b32', s(sCk), '0')
    A('s_mov_b32', s(sStW), s(sM0X))
    def wo_parts():
        parts = []
        for i in range(5):
            def f(i=i):
                if i == 0:
                    A('s_mul_i32', s(sWoff), s(sCk), str(32 * 1152))
                    A('s_add_u32', s(sWoff), s(sWoff), s(sWoBase))
                    A('s_cmp_gt_u32', s(sCk), '15')
                    A('s_cselect_b32', s(sWoff), OOB, s(sWoff))
                    if opt.get('o_oob'): A('s_mov_b32', s(sWoff), OOB)
                    A('s_add_u32', s(sCk), s(sCk), '1')
                if i == 4:
                    lab = A.newlabel('LF_o5')
                    A('s_cmp_lg_u32', s(sTeam), '0')
                    A('s_cbranch_scc1', lab)
                A('s_add_u32', 'm0', s(sStW), str(i * 8192))
                if not opt.get('o_nodma'):
                    A('buffer_load_dwordx4', v(vOd + i), s(sWo, 4), s(sWoff), mods='offen lds')
                if i == 4:
                    A.label(lab)
                    A('s_add_u32', s(sStW), s(sStW), str(STG))
                    A('s_cmp_ge_u32', s(sStW), str(3 * STG))
                    A('s_cselect_b32', s(sStW), s(sM0X), s(sStW))
            parts.append(f)
        return parts
    A('s_barrier')
    for d in wo_parts(): d()
    A('v_bfe_u32', t0, L, '4', '1')
    A('v_and_b32', t2, '15', L)
    A('v_lshrrev_b32', t1, '5', L)
    A('v_lshlrev_b32', t2, '4', t2)
    A('v_lshl_add_u32', t2, t0, '10', t2)
    A('v_lshl_add_u32', t2, t1, '8', t2)
    A('s_lshr_b32', s(sTmp), s(sWave), '1')
    A('s_cmp_eq_u32', s(sTmp), '3')
    A('s_cselect_b32', s(sTmp), '0', s(sTmp))
    A('s_lshl_b32', s(sTmp), s(sTmp), '14')
    A('s_and_b32', s(sTmp2), s(sWave), '1')
    A('s_lshl_b32', s(sTmp2), s(sTmp2), '11')
    A('s_add_u32', s(sTmp), s(sTmp), s(sTmp2))
    A('s_add_u32', s(sTmp), s(sTmp), str(OT))
    A('v_add_u32', v(vOw), s(sTmp), t2)
    def owrite():
        for t in range(4):
            for a in range(2):
                A('ds_write_b128', v(vOw), v(vQ0 + 8 * t + 4 * a, 4), mods=f'offset:{t * 4096 + a * 512}')
    A('s_cmp_ge_u32', s(sWave), '6')
    A('s_cbranch_scc1', 'LF_O_now')
    owrite()
    A.label('LF_O_now')
    A('s_lshl_b32', s(sTmp), s(sTeam), '11')
    A('s_add_u32', s(sTmp), s(sTmp), str(OT))
    A('v_lshlrev_b32', t0, '4', L)
    A('v_add_u32', v(vOb), s(sTmp), t0)
    A('v_lshrrev_b32', t0, '2', L)
    A('v_bfe_u32', t1, L, '3', '2')
    A('v_mul_u32_u24', t0, '1152', t0)
    A('v_and_b32', t2, '3', L)
    A('v_lshl_add_u32', t0, t2, '3', t0)
    for u in range(4):
        A('s_mul_i32', s(sTmp), s(sW3), '9')
        A('s_add_u32', s(sTmp), s(sTmp), str(u))
        A('s_and_b32', s(sTmp2), s(sTmp), '3')
        A('s_sub_u32', s(sTmp), s(sTmp), s(sTmp2))
        A('v_xor_b32', t3, s(sTmp2), t1)
        A('v_add_u32', t3, s(sTmp), t3)
        A('v_lshl_add_u32', v(vOa + u), t3, '5', t0)
    A('s_cmp_eq_u32', s(sFlagZ), '0')
    A('s_cbranch_scc1', 'LF_O_nz')
    for r in range(72):
        A('v_mov_b32', v(vAcc + r), '0')
    A.label('LF_O_nz')

    lg = Cnt(A)
    def aread(st, tn):
        u, k4 = tn & 3, tn >> 2
        for e in range(2):
            A('ds_read_b64_tr_b16', v(vFA + 36 * st + 4 * tn + 2 * e, 2), v(vRa + u), mods=f'offset:{e * 18432 + k4 * 128}')
            lg.issue(('A', st, tn))
    def bread(st):
        for qs in range(2):
            A('ds_read_b128', v(vFB + 8 * st + 4 * qs, 4), v(vRb), mods=f'offset:{qs * 1024}')
            lg.issue(('B', st, qs))
    def vmwait_groups(n):
        l4, le = A.newlabel('LF_w4'), A.newlabel('LF_we')
        A('s_cmp_lg_u32', s(sTeam), '0')
        A('s_cbranch_scc1', l4)
        A.waitcnt(vm=5 * n, lgkm=0)
        A('s_branch', le)
        A.label(l4)
        A.waitcnt(vm=4 * n, lgkm=0)
        A.label(le)
        lg.p = []
    def set_raddr():
        for u in range(4):
            A('v_add_u32', v(vRa + u), s(sStR), v(vOa + u))
        A('v_add_u32', v(vRb), s(sBoff), v(vOb))
        A('s_add_u32', s(sStR), s(sStR), str(STG))
        A('s_cmp_ge_u32', s(sStR), str(3 * STG))
        A('s_cselect_b32', s(sStR), '0', s(sStR))
        A('s_add_u32', s(sBoff), s(sBoff), '4096')
        A('s_cmp_ge_u32', s(sBoff), str(12 * 4096))
        A('s_cselect_b32', s(sBoff), '0', s(sBoff))
    A('s_mov_b32', s(sStR), '0')
    A('s_mov_b32', s(sBoff), '0')
    set_raddr()
    for d in wo_parts(): d()
    vmwait_groups(1)
    A('s_barrier')
    bread(0)
    for tn in range(6): aread(0, tn)
    lg.wait(('A', 0, 2))
    for tn in range(6, 9): aread(0, tn)
    for d in wo_parts(): d()
    vmwait_groups(1)
    A('s_barrier')
    A('s_mov_b32', s(sIt), '0')
    A.label('LF_Oloop')
    for st in range(2):
        set_raddr()
        if st == 0:
            A('s_cmp_lg_u32', s(sIt), '3')
            A('s_cbranch_scc1', 'LF_O_nlw')
            A('s_cmp_lt_u32', s(sWave), '6')
            A('s_cbranch_scc1', 'LF_O_nlw')
            owrite()
            A.waitcnt(lgkm=0)
            A.label('LF_O_nlw')
        dma = wo_parts()
        n = 0
        rd = [lambda: bread(1 - st)] + [(lambda tn=tn: aread(1 - st, tn)) for tn in range(9)]
        for tn in range(9):
            for qs in range(2):
                if n == 16:
                    vmwait_groups(1)
                    A('s_barrier')
                acc = v(vAcc + (tn * 2 + qs) * 4, 4)
                if not opt.get('o_nomfma'):
                    A('v_mfma_f32_16x16x32_bf16', acc, v(vFA + 36 * st + 4 * tn, 4), v(vFB + 8 * st + 4 * qs, 4), acc)
                n += 1
                if opt.get('o_noread'): rd = []
                if rd and n not in (3, 6, 9):
                    if len(lg.p) > 12:
                        lg.wait(lg.p[1])
                    rd.pop(0)()
                if dma and n % 3 == 0:
                    dma.pop(0)()
        assert not rd and not dma
    A('s_add_u32', s(sIt), s(sIt), '1')
    A('s_cmp_lt_u32', s(sIt), '8')
    A('s_cbranch_scc1', 'LF_Oloop')
    A.waitcnt(vm=0)
    A('s_cmp_eq_u32', s(sFlagS), '0')
    A('s_cbranch_scc1', 'LF_O_ns')
    A('v_lshlrev_b32', t0, '4', L)
    for tn in range(9):
        d = vFA + 4 * tn
        for qs in range(2):
            a = vAcc + (tn * 2 + qs) * 4
            A('v_cvt_pk_bf16_f32', v(d + 2 * qs), v(a), v(a + 1))
            A('v_cvt_pk_bf16_f32', v(d + 2 * qs + 1), v(a + 2), v(a + 3))
        if tn % 4 == 0:
            A('s_add_u32', s(sTmp), s(sPoff), str(tn * 1024))
        A('buffer_store_dwordx4', v(d, 4), t0, s(sWS, 4), s(sTmp), mods=f'offen offset:{(tn % 4) * 1024}')
    A.label('LF_O_ns')
    ret(A)


def reduce_kernel(A, opt):
    kn = 'reduce_kernel'
    A.raw('.globl %s\n.p2align 8\n.type %s,@function' % (kn, kn))
    A.label(kn)
    A('s_cmp_ge_u32', 's2', str(64 * 18))
    A('s_cbranch_scc1', 'LR_done')
    A('s_load_dwordx2', s(16, 2), s(0, 2), '80')
    A('s_load_dwordx2', s(18, 2), s(0, 2), '96')
    A('s_mul_i32', s(20), 's2', '3641')
    A('s_lshr_b32', s(20), s(20), '16')
    A('s_mul_i32', s(21), s(20), '18')
    A('s_sub_u32', s(21), 's2', s(21))
    A('v_lshrrev_b32', v(1), '6', v(0))
    A('v_readfirstlane_b32', s(22), v(1))
    A('s_lshl_b32', s(23), s(21), '2')
    A('s_add_u32', s(23), s(23), s(22))
    A('s_mul_i32', s(24), s(23), '57')
    A('s_lshr_b32', s(24), s(24), '9')
    A('s_mul_i32', s(25), s(24), '9')
    A('s_sub_u32', s(25), s(23), s(25))
    A('v_and_b32', v(1), '63', v(0))
    A('v_lshlrev_b32', v(2), '4', v(1))
    A.waitcnt(lgkm=0)
    srd(A, 4, 16, OUT_BYTES)
    srd(A, 8, 18, WS_BYTES)
    A('s_mul_i32', s(26), s(20), str(8 * PART))
    A('s_lshl_b32', s(27), s(23), '10')
    A('s_add_u32', s(26), s(26), s(27))
    A('s_and_b32', s(28), s(20), '1')
    for g in range(4):
        A('s_add_u32', s(30), s(26), str(g * 2 * PART))
        A('buffer_load_dwordx4', v(8 + 4 * g, 4), v(2), s(8, 4), s(30), mods='offen')
    A('s_mul_i32', s(29), s(28), str(2 * PART))
    A('s_add_u32', s(29), s(29), s(26))
    for k in range(2):
        A('s_add_u32', s(30), s(29), str(PART + k * 4 * PART))
        A('buffer_load_dwordx4', v(24 + 4 * k, 4), v(2), s(8, 4), s(30), mods='offen')
    A('s_and_b32', s(31), s(20), '31')
    A('s_lshr_b32', s(32), s(20), '5')
    A('s_lshl_b32', s(31), s(31), '6')
    A('s_lshr_b32', s(33), s(24), '2')
    A('s_lshl_b32', s(33), s(33), '5')
    A('s_add_u32', s(31), s(31), s(33))
    A('s_mul_i32', s(31), s(31), '2304')
    A('s_mul_i32', s(32), s(32), '1152')
    A('s_add_u32', s(31), s(31), s(32))
    A('s_and_b32', s(33), s(24), '3')
    A('s_mul_i32', s(33), s(33), '288')
    A('s_add_u32', s(31), s(31), s(33))
    A('s_lshl_b32', s(33), s(25), '5')
    A('s_add_u32', s(31), s(31), s(33))
    A('v_and_b32', v(3), '15', v(1))
    A('v_mul_u32_u24', v(3), '2304', v(3))
    A('v_lshrrev_b32', v(4), '4', v(1))
    A('v_lshl_add_u32', v(3), v(4), '3', v(3))
    for k in range(6):
        A.waitcnt(vm=5 - k)
        for d in range(4):
            src = v(8 + 4 * k + d)
            if k == 0:
                A('v_lshlrev_b32', v(32 + 2 * d), '16', src)
                A('v_and_b32', v(33 + 2 * d), '0xffff0000', src)
            else:
                A('v_lshlrev_b32', v(40), '16', src)
                A('v_and_b32', v(41), '0xffff0000', src)
                A('v_add_f32', v(32 + 2 * d), v(32 + 2 * d), v(40))
                A('v_add_f32', v(33 + 2 * d), v(33 + 2 * d), v(41))
    for d in range(4):
        A('v_cvt_pk_bf16_f32', v(44 + d), v(32 + 2 * d), v(33 + 2 * d))
    A('buffer_store_dwordx2', v(44, 2), v(3), s(4, 4), s(31), mods='offen')
    A('s_add_u32', s(31), s(31), str(16 * 2304))
    A('buffer_store_dwordx2', v(46, 2), v(3), s(4, 4), s(31), mods='offen')
    A.label('LR_done')
    A('s_endpgm')
    return kn


def kd(name, vgpr, sgpr):
    return f'''.amdhsa_kernel {name}
  .amdhsa_next_free_vgpr {vgpr}
  .amdhsa_next_free_sgpr {sgpr}
  .amdhsa_accum_offset {vgpr}
  .amdhsa_group_segment_fixed_size 0
  .amdhsa_kernarg_size 104
  .amdhsa_user_sgpr_count 2
  .amdhsa_user_sgpr_kernarg_segment_ptr 1
  .amdhsa_system_sgpr_workgroup_id_x 1
.end_amdhsa_kernel
'''

def generate(opt):
    A = Asm()
    ka = fused_kernel(A, opt)
    kb = reduce_kernel(A, opt)
    errs = A.check_branches()
    for e in errs:
        print('HAZARD:', e, file=sys.stderr)
    assert not errs
    hdr = [l for l in HDR if l.startswith(';') and '@launch' not in l]
    out = '\n'.join(hdr) + '\n'
    out += f'; @launch kernel={ka} grid=(256,1,1) block=(512,1,1) lds=163840\n'
    out += f'; @launch kernel={kb} grid=(1152,1,1) block=(256,1,1) lds=0\n'
    out += '.amdgcn_target "amdgcn-amd-amdhsa--gfx950"\n.text\n'
    out += A.text()
    out += '.section .rodata,"a"\n.p2align 6\n'
    out += kd(ka, 256, 100)
    out += '.p2align 6\n'
    out += kd(kb, 48, 40)
    return out

if __name__ == '__main__':
    opt = {}
    for a in sys.argv[2:]:
        k, val = a.split('=')
        opt[k] = eval(val)
    txt = generate(opt)
    open(sys.argv[1], 'w').write(txt)
    print('wrote', sys.argv[1], len(txt))
```

```python
import sys, math, struct
sys.path.insert(0, 'gen')
from asmlib import *

NAME = 'concat_heads__gqa_block_cached__gqa_block_cached__near_ridge'
HDR = open('cdna_kernels/' + NAME + '.s.ref').read().split('\n')

X_BYTES = 32 * 64 * 576 * 2
KV_BYTES = 32 * 16 * 512 * 128 * 2
W_BYTES = 576 * 4096 * 2
OUT_BYTES = 32 * 64 * 1152 * 2
PART = 64 * 576 * 2
WS_BYTES = 64 * 8 * PART
OOB = '0x7f000000'

def f32(x):
    return hex(int.from_bytes(struct.pack('<f', x), 'little'))

class Cnt:
    def __init__(self, A, maxn=15):
        self.A = A; self.p = []; self.maxn = maxn
    def issue(self, tag):
        self.p.append(tag)
        assert len(self.p) <= self.maxn, len(self.p)
    def wait(self, tag):
        idx = None
        for k, t in enumerate(self.p):
            if t == tag:
                idx = k
        if idx is None:
            return
        self.A.waitcnt(lgkm=len(self.p) - idx - 1)
        self.p = self.p[idx + 1:]

def srd(A, d, plo, nbytes):
    A('s_mov_b32', s(d), s(plo))
    A('s_and_b32', s(d + 1), s(plo + 1), '0xffff')
    A('s_mov_b32', s(d + 2), hex(nbytes))
    A('s_mov_b32', s(d + 3), '0x00020000')

sX, sK, sV, sWq, sWo, sWS = 4, 8, 12, 16, 20, 24
sWave, sTeam, sTmp, sTmp2, sType, sC, sThr = 28, 29, 30, 31, 32, 33, 34
sR, sIt, sT, sKVoff, sKVbase, sM0KV = 35, 36, 37, 38, 39, 40
sWbase, sXbase, sWoff, sXoff, sCk, sXk = 41, 42, 43, 44, 45, 46
sG, sB, sP, sW3 = 47, 48, 49, 50
sM0W, sM0X, sWoBase, sPoff, sFlagZ, sFlagS = 51, 52, 53, 54, 55, 56
sRet = 58
sM0O = 60
sLd = 70
sStamp = 72
vTid, vLane = 0, 1
vA0 = 4
vQ0, vQ1 = 32, 64
vKd, vVd = 27, 31
sKoff, sVoff, sKn, sVn, sPre, sNext, sJump = 38, 57, 37, 63, 64, 65, 66
vW = 96


def fused_kernel(A, opt):
    kn = 'fused_kernel'
    A.raw('.globl %s\n.p2align 8\n.type %s,@function' % (kn, kn))
    A.label(kn)
    L = v(vLane)
    nst = [0]
    def stamp():
        if opt.get('stamp'):
            A('s_memrealtime', s(sStamp + 2 * nst[0], 2))
            A('s_memtime', s(70, 2))
            A.waitcnt(lgkm=0)
            A('s_mov_b32', s(sStamp + 2 * nst[0] + 1), s(70))
            nst[0] += 1

    A('s_cmp_ge_u32', 's2', '256')
    A('s_cbranch_scc1', 'LF_done')
    if opt.get('codewarm', True):
        A('s_getpc_b64', s(96, 2))
        A('s_and_b32', s(96), s(96), '0xffffff00')
        A('s_and_b32', s(97), s(97), '0xffff')
        A('s_mov_b32', s(98), 'CODEBYTES')
        A('s_mov_b32', s(99), '0x00020000')
        A('v_lshlrev_b32', v(2), '7', v(vTid))
        A('buffer_load_dword', v(3), v(2), s(96, 4), '0', mods='offen ' + opt.get('cflags', ''))
    A('s_load_dwordx8', s(72, 8), s(0, 2), '0')
    A('s_load_dwordx2', s(80, 2), s(0, 2), '32')
    A('s_load_dwordx8', s(84, 8), s(0, 2), '40')
    A('s_load_dwordx2', s(92, 2), s(0, 2), '72')
    A('s_load_dwordx2', s(94, 2), s(0, 2), '96')
    A('s_and_b32', s(sTmp), 's2', '7')
    A('s_lshr_b32', s(sP), s(sTmp), '2')
    A('s_and_b32', s(sG), s(sTmp), '3')
    A('s_lshr_b32', s(sB), 's2', '3')
    A('s_add_u32', s(sType), s(sB), s(sG))
    A('s_and_b32', s(sType), s(sType), '1')
    if opt.get('typemode') == 'p': A('s_mov_b32', s(sType), s(sP))
    if opt.get('typemode') == 'g': A('s_and_b32', s(sType), s(sG), '1')
    A('v_and_b32', L, '63', v(vTid))
    A('v_lshrrev_b32', v(2), '6', v(vTid))
    A('v_readfirstlane_b32', s(sWave), v(2))
    A('s_lshr_b32', s(sTeam), s(sWave), '2')
    A('s_and_b32', s(sW3), s(sWave), '3')
    A('s_mov_b32', s(sC), f32((128 ** -0.5) * math.log2(math.e)))
    A('s_mov_b32', s(sThr), f32(8.0 / ((128 ** -0.5) * math.log2(math.e))))
    A.waitcnt(lgkm=0)
    A('s_cmp_eq_u32', s(sP), '0')
    for k in range(4):
        A('s_cselect_b64', s(72 + 2 * k, 2), s(72 + 2 * k, 2), s(84 + 2 * k, 2))
    A('s_cselect_b64', s(80, 2), s(80, 2), s(92, 2))
    srd(A, sX, 72, X_BYTES)
    srd(A, sK, 74, KV_BYTES)
    srd(A, sV, 76, KV_BYTES)
    srd(A, sWq, 78, W_BYTES)
    srd(A, sWo, 80, W_BYTES)
    srd(A, sWS, 94, (0x10000000 if opt.get('stamp') else WS_BYTES))
    A('s_lshl_b32', s(sKVbase), s(sB), '4')
    A('s_lshl_b32', s(sTmp), s(sG), '2')
    A('s_add_u32', s(sKVbase), s(sKVbase), s(sTmp))
    A('s_add_u32', s(sKVbase), s(sKVbase), s(sTeam))
    A('s_lshl_b32', s(sKVbase), s(sKVbase), '17')
    A('s_lshl_b32', s(sTmp), s(sW3), '12')
    A('s_add_u32', s(sKVbase), s(sKVbase), s(sTmp))
    A('s_lshl_b32', s(sM0KV), s(sTeam), '16')
    A('s_add_u32', s(sM0KV), s(sM0KV), s(sTmp))
    A('s_lshl_b32', s(sM0W), s(sWave), '12')
    A('s_lshl_b32', s(sM0X), s(sWave), '10')
    A('s_lshl_b32', s(sXbase), s(sB), '6')
    A('s_lshl_b32', s(sTmp), s(sWave), '3')
    A('s_add_u32', s(sXbase), s(sXbase), s(sTmp))
    A('s_mulk_i32', s(sXbase), '1152')
    A('s_lshl_b32', s(sPoff), s(sP), '5')
    A('s_add_u32', s(sPoff), s(sPoff), s(sB))
    A('s_lshl_b32', s(sPoff), s(sPoff), '2')
    A('s_add_u32', s(sPoff), s(sPoff), s(sG))
    A('s_mul_i32', s(sPoff), s(sPoff), str(2 * PART))
    A('v_lshrrev_b32', v(4), '4', L)
    A('v_and_b32', v(5), '15', L)
    for jj in range(4):
        A('v_add_u32', v(6), str(4 * jj), v(4))
        A('v_xor_b32', v(6), v(6), v(5))
        A('v_lshlrev_b32', v(6), '4', v(6))
        A('v_lshl_add_u32', v(vKd + jj), v(4), '8', v(6))
    A('v_lshlrev_b32', v(6), '2', v(4))
    A('v_xor_b32', v(6), v(6), v(5))
    A('v_lshlrev_b32', v(6), '4', v(6))
    A('v_lshl_add_u32', v(vVd), v(4), '8', v(6))
    if opt.get('q0touch', False):
        A('s_lshr_b32', s(sTmp2), s(sB), '1')
        A('s_lshl_b32', s(sTmp2), s(sTmp2), '3')
        A('s_add_u32', s(sTmp2), s(sTmp2), s(sWave))
        A('s_mul_i32', s(sTmp2), s(sTmp2), '36')
        A('v_min_u32', v(4), '35', L)
        A('v_add_u32', v(4), s(sTmp2), v(4))
        A('v_and_b32', v(5), '7', v(4))
        A('v_lshrrev_b32', v(4), '3', v(4))
        A('v_lshlrev_b32', v(4), '13', v(4))
        A('v_lshl_add_u32', v(4), v(5), '7', v(4))
        A('s_lshl_b32', s(sTmp), s(sG), '1')
        A('s_add_u32', s(sTmp), s(sTmp), s(sType))
        A('s_lshl_b32', s(sTmp), s(sTmp), '10')
        A('buffer_load_dword', v(3), v(4), s(sWq, 4), s(sTmp), mods='offen nt')
        A('v_lshlrev_b32', v(4), '7', L)
        A('buffer_load_dword', v(3), v(4), s(sX, 4), s(sXbase), mods='offen nt')
        A('buffer_load_dword', v(3), v(4), s(sX, 4), s(sXbase), mods='offen offset:1024 nt')
    if opt.get('tlbwarm', False):
        A('s_cmp_lg_u32', s(sWave), '0')
        A('s_cbranch_scc1', 'LF_ntw')
        A('v_lshlrev_b32', v(4), '13', L)
        A('buffer_load_dword', v(3), v(4), s(sK, 4), s(sKVbase), mods='offen nt')
        A('buffer_load_dword', v(3), v(4), s(sV, 4), s(sKVbase), mods='offen nt')
        A.label('LF_ntw')
    stamp()

    def kvinit(r):
        A('s_add_u32', s(sKoff), s(sKVbase), str(r << 18))
        if opt.get('kv_oob'): A('s_mov_b32', s(sKoff), '0x70000000')
        A('s_mov_b32', s(sVoff), s(sKoff))
        A('s_mov_b32', s(sKn), '0')
        A('s_mov_b32', s(sVn), '0')
    def call(lbl):
        A('s_call_b64', s(sRet, 2), lbl)
        A('s_nop', '7'); A('s_nop', '7')
    def setr(r):
        A('s_mov_b32', s(sR), str(r))
    def mov32(dst, src):
        for i in range(32):
            A('v_mov_b32', v(dst + i), v(src + i))
    def swap32():
        for i in range(32):
            A('v_swap_b32', v(vQ0 + i), v(vQ1 + i))

    force = opt.get('force_type')
    if force is not None:
        A('s_mov_b32', s(sTmp), str(force))
        A('s_cmp_eq_u32', s(sTmp), '0')
    else:
        A('s_cmp_eq_u32', s(sType), '0')
    A('s_cbranch_scc0', 'LF_G2')
    if opt.get('only_g2'): A('s_branch', 'LF_done')
    for r in range(2):
        setr(r); kvinit(r)
        A('s_mov_b32', s(sPre), '1'); A('s_mov_b32', s(sNext), '0'); A('s_mov_b32', s(sJump), '0x40000000')
        call('LF_Q'); stamp()
        call('LF_S'); stamp()
        if r == 0:
            mov32(vQ1, vQ0)
    A('s_branch', 'LF_tail')
    A.label('LF_G2')
    nst[0] = 1
    setr(1); A('s_mov_b32', s(sPre), '0'); call('LF_Q'); stamp()
    mov32(vQ1, vQ0)
    setr(0); kvinit(0)
    A('s_mov_b32', s(sPre), '1'); A('s_mov_b32', s(sNext), '1'); A('s_mov_b32', s(sJump), '0x20000')
    call('LF_Q'); stamp()
    call('LF_S'); stamp()
    swap32()
    setr(1)
    A('s_mov_b32', s(sPre), '3'); A('s_mov_b32', s(sNext), '0'); A('s_mov_b32', s(sJump), '0x40000000')
    call('LF_S'); stamp()
    A.label('LF_tail')
    A('s_mov_b32', s(sFlagZ), '1'); A('s_mov_b32', s(sFlagS), '0')
    call('LF_O'); stamp()
    mov32(vQ0, vQ1)
    setr(0)
    A('s_mov_b32', s(sFlagZ), '0'); A('s_mov_b32', s(sFlagS), '1')
    call('LF_O'); stamp()
    A.label('LF_end')
    if opt.get('stamp'):
        A('s_lshl_b32', s(sTmp), 's2', '3')
        A('s_add_u32', s(sTmp), s(sTmp), s(sWave))
        A('s_lshl_b32', s(sTmp), s(sTmp), '6')
        A('s_add_u32', s(sTmp), s(sTmp), hex(200 << 20))
        A('v_mov_b32', v(6), '0')
        A('s_mov_b64', 'exec', '1')
        for i in range(7):
            A('v_mov_b32', v(4), s(sStamp + 2 * i))
            A('v_mov_b32', v(5), s(sStamp + 2 * i + 1))
            A('buffer_store_dwordx2', v(4, 2), v(6), s(sWS, 4), s(sTmp), mods=f'offen offset:{8*i}')
            A.waitcnt(vm=0)
    A.label('LF_done')
    A('s_endpgm')

    phase_q(A, opt)
    phase_s(A, opt)
    phase_o(A, opt)
    return kn


def kv_parts(A, opt, slot):
    kvflags = opt.get('kvflags', 'nt')
    parts = []
    isk = slot % 2 == 0
    so, sn = (sKoff, sKn) if isk else (sVoff, sVn)
    for jj in range(4):
        def f(jj=jj):
            if jj == 0:
                A('s_add_u32', 'm0', s(sM0KV), str(slot * 16384))
            if isk:
                A('buffer_load_dwordx4', v(vKd + jj), s(sK, 4), s(so), mods=f'offen offset:{jj*1024} {kvflags} lds')
            else:
                A('buffer_load_dwordx4', v(vVd), s(sV, 4), s(so), mods=f'offen offset:{jj*1024} {kvflags} lds')
            if jj == 3:
                A('s_add_u32', s(sn), s(sn), '1')
                A('s_add_u32', s(so), s(so), '0x4000')
                A('s_and_b32', s(sTmp2), s(sn), '7')
                A('s_cselect_b32', s(sTmp), '0', s(sJump))
                A('s_add_u32', s(so), s(so), s(sTmp))
        parts.append(f)
    return parts


def ret(A):
    A('s_nop', '7'); A('s_nop', '7')
    A('s_setpc_b64', s(sRet, 2))


def phase_q(A, opt):
    L = v(vLane)
    vWd, vWa, vXd, vXa = 4, 8, 12, 13
    t0, t1, t2, t3, t4, t5 = [v(x) for x in range(21, 27)]
    vAcc, vFA, vFB = vW, vW + 64, vW + 96
    WST = [98304, 16384, 131072]
    XSL = [49152, 57344, 81920]
    A.label('LF_Q')
    for jj in range(4):
        A('v_xor_b32', t0, str(4 * jj), L)
        A('v_lshlrev_b32', t0, '4', t0)
        A('v_add_u32', v(vWd + jj), str(jj * (8192 - 1024)), t0)
    A('s_and_b32', s(sTmp), s(sWave), '1')
    A('s_lshl_b32', s(sTmp), s(sTmp), '2')
    A('v_lshrrev_b32', t0, '4', L)
    A('v_add_u32', t0, s(sTmp), t0)
    A('v_and_b32', t1, '7', L)
    A('v_xor_b32', t0, t0, t1)
    A('v_lshlrev_b32', t0, '4', t0)
    A('v_lshrrev_b32', t1, '3', L)
    A('v_mul_u32_u24', t1, '1152', t1)
    A('v_add_u32', v(vXd), t0, t1)
    A('s_lshl_b32', s(sWbase), s(sG), '1')
    A('s_add_u32', s(sWbase), s(sWbase), s(sR))
    A('s_lshl_b32', s(sWbase), s(sWbase), '10')
    A('s_lshl_b32', s(sTmp), s(sWave), '15')
    A('s_add_u32', s(sWbase), s(sWbase), s(sTmp))
    A('s_mul_i32', s(sTmp), s(sB), '57')
    A('s_lshr_b32', s(sTmp), s(sTmp), '9')
    A('s_mul_i32', s(sTmp), s(sTmp), '9')
    A('s_sub_u32', s(sXk), s(sB), s(sTmp))
    A('s_lshl_b32', s(sCk), s(sXk), '1')

    def w_parts(st):
        parts = []
        for jj in range(4):
            def f(jj=jj):
                if jj == 0:
                    A('s_lshl_b32', s(sWoff), s(sCk), '18')
                    A('s_add_u32', s(sWoff), s(sWoff), s(sWbase))
                    A('s_add_u32', s(sCk), s(sCk), '1')
                    A('s_cmp_eq_u32', s(sCk), '18')
                    A('s_cselect_b32', s(sCk), '0', s(sCk))
                A('s_add_u32', 'm0', s(sM0W), str(WST[st]))
                A('buffer_load_dwordx4', v(vWd + jj), s(sWq, 4), s(sWoff), mods=f'offen offset:{jj*1024} {opt.get("wqflags", "")} lds')
            parts.append(f)
        return parts
    def x_part(sl):
        def f():
            A('s_lshl_b32', s(sXoff), s(sXk), '7')
            A('s_add_u32', s(sXoff), s(sXoff), s(sXbase))
            A('s_add_u32', s(sXk), s(sXk), '1')
            A('s_cmp_eq_u32', s(sXk), '9')
            A('s_cselect_b32', s(sXk), '0', s(sXk))
            A('s_add_u32', 'm0', s(sM0X), str(XSL[sl]))
            A('buffer_load_dwordx4', v(vXd), s(sX, 4), s(sXoff), mods='offen ' + opt.get('xflags', '') + ' lds')
        return [f]
    A('s_barrier')
    for d in x_part(0) + w_parts(0):
        d()
    A('v_bfe_u32', t0, L, '2', '2')
    A('v_lshrrev_b32', t1, '5', L)
    A('v_and_b32', t2, '1', L)
    A('v_bfe_u32', t3, L, '1', '1')
    A('v_lshl_add_u32', t2, t2, '1', t3)
    A('v_bfe_u32', t3, L, '4', '1')
    A('v_lshl_add_u32', t4, t1, '3', t0)
    A('v_lshlrev_b32', t4, '10', t4)
    A('v_lshl_add_u32', t4, t3, '5', t4)
    A('v_lshl_add_u32', t4, t2, '3', t4)
    A('s_lshr_b32', s(sTmp), s(sWave), '1')
    A('s_lshl_b32', s(sTmp), s(sTmp), '8')
    A('v_add_u32', t4, s(sTmp), t4)
    for t in range(4):
        A('v_xor_b32', t5, str(t), t0)
        A('v_lshl_add_u32', v(vWa + t), t5, '6', t4)
    vWa2 = 17
    for t in range(4):
        A('v_add_u32', v(vWa2 + t), '0x18000', v(vWa + t))
    A('v_and_b32', t0, '31', L)
    A('s_and_b32', s(sTmp), s(sWave), '1')
    A('s_lshl_b32', s(sTmp), s(sTmp), '5')
    A('v_add_u32', t0, s(sTmp), t0)
    A('v_bfe_u32', t2, L, '1', '3')
    A('v_xor_b32', t2, t2, t1)
    for s4 in range(4):
        A('v_xor_b32', t3, str(2 * s4), t2)
        A('v_lshlrev_b32', t3, '4', t3)
        A('v_lshl_add_u32', v(vXa + s4), t0, '7', t3)
        A('v_add_u32', v(vXa + s4), '49152', v(vXa + s4))
    for r in range(64):
        A('v_mov_b32', v(vAcc + r), '0')

    lg = Cnt(A)
    def reads(kk, part):
        c, sidx = (kk >> 1) % 3, kk & 1
        X, s4 = (kk >> 2) % 3, kk & 3
        par = kk & 1
        base = WST[c]
        if part == 'B':
            A('ds_read_b128', v(vFB + 4 * par, 4), v(vXa + s4), mods=f'offset:{XSL[X] - 49152}')
            lg.issue(('B', par))
        else:
            t = part
            for e in range(2):
                off = base + (16 * sidx + 4 * e) * 1024
                if base >= 98304:
                    A('ds_read_b64_tr_b16', v(vFA + 16 * par + 4 * t + 2 * e, 2), v(vWa2 + t), mods=f'offset:{off - 98304}')
                else:
                    A('ds_read_b64_tr_b16', v(vFA + 16 * par + 4 * t + 2 * e, 2), v(vWa + t), mods=f'offset:{off}')
                lg.issue(('A', par, t))
    def kstep(kk, nxt, sync, dma):
        par = kk & 1
        if sync is not None:
            A.waitcnt(vm=sync, lgkm=0); lg.p = []
            A('s_barrier')
        dma = list(dma)
        for t in range(4):
            lg.wait(('A', par, t)); lg.wait(('B', par))
            acc = v(vAcc + 16 * t, 16)
            A('v_mfma_f32_32x32x16_bf16', acc, v(vFA + 16 * par + 4 * t, 4), v(vFB + 4 * par, 4), acc)
            if nxt:
                if t == 0: reads(kk + 1, 'B'); reads(kk + 1, 0)
                elif t == 1: reads(kk + 1, 1); reads(kk + 1, 2)
                elif t == 2: reads(kk + 1, 3)
            if dma and t != 0:
                dma.pop(0)()
        return dma

    for d in w_parts(1) + x_part(1):
        d()
    A.waitcnt(vm=5)
    A('s_barrier')
    reads(0, 'B')
    for t in range(4): reads(0, t)
    for d in w_parts(2):
        d()
    saved = list(lg.p)
    A('s_mov_b32', s(sIt), '0')
    def window(last):
        carry = []
        for c in range(6):
            carry = kstep(2 * c, True, None, carry)
            assert not carry
            if last and c >= 3:
                vm = {3: 4, 4: 0, 5: None}[c]
                if c == 5:
                    kstep(2 * c + 1, False, None, [])
                else:
                    kstep(2 * c + 1, True, vm, [])
                    if c == 4:
                        A('s_cmp_eq_u32', s(sPre), '0')
                        A('s_cbranch_scc1', 'LF_Q_nopre')
                        for d in kv_parts(A, opt, 0): d()
                        A.label('LF_Q_nopre')
                continue
            vm = 4 if c % 2 == 0 else 5
            newp = w_parts(c % 3)
            if c % 2 == 0 and not (last and c == 2):
                newp = newp + x_part(((c >> 1) + 2) % 3)
            carry = kstep(2 * c + 1, True, vm, newp)
        return carry
    A.label('LF_Qloop')
    carry = window(False)
    for d in carry: d()
    assert lg.p == saved, (lg.p, saved)
    A('s_add_u32', s(sIt), s(sIt), '1')
    A('s_cmp_lt_u32', s(sIt), '2')
    A('s_cbranch_scc1', 'LF_Qloop')
    window(True)
    assert not lg.p
    for r in range(64):
        A('v_mul_f32', v(vAcc + r), s(sC), v(vAcc + r))
    for t in range(4):
        for hf in range(2):
            for i in range(4):
                a = vAcc + t * 16 + 8 * hf + 2 * i
                A('v_cvt_pk_bf16_f32', v(vQ0 + 4 * (2 * t + hf) + i), v(a), v(a + 1))
    ret(A)


def phase_s(A, opt):
    L = v(vLane)
    vKa, vVa, vM, vL = 4, 12, 16, 17
    vt = list(range(18, 26))
    t0, t1, t2, t3, t4, t5 = [v(x) for x in vt[:6]]
    vO, vS, vP, vF = vW, vW + 64, vW + 96, vW + 112
    A.label('LF_S')
    A('s_barrier')
    def dma_parts(slot):
        return kv_parts(A, opt, slot)
    A('s_cmp_eq_u32', s(sPre), '3')
    A('s_cbranch_scc1', 'LF_S_pre3')
    for sl in range(1, 3):
        for d in dma_parts(sl): d()
    A.label('LF_S_pre3')
    if opt.get('wotouch', True):
        A('s_lshl_b32', s(sTmp), s(sG), '1')
        A('s_add_u32', s(sTmp), s(sTmp), s(sR))
        A('s_mul_i32', s(sTmp), s(sTmp), str(512 * 1152))
        A('s_lshr_b32', s(sTmp2), s(sB), '1')
        A('s_lshl_b32', s(sTmp2), s(sTmp2), '3')
        A('s_add_u32', s(sTmp2), s(sTmp2), s(sWave))
        A('s_mul_i32', s(sTmp2), s(sTmp2), '4608')
        A('s_add_u32', s(sTmp), s(sTmp), s(sTmp2))
        A('v_min_u32', t0, '35', L)
        A('v_lshlrev_b32', t0, '7', t0)
        A('buffer_load_dword', v(3), t0, s(sWo, 4), s(sTmp), mods='offen ' + opt.get('wotflags', ''))
    A('s_lshl_b32', s(sTmp), s(sTeam), '16')
    A('v_and_b32', t0, '31', L)
    A('v_lshrrev_b32', t1, '5', L)
    A('v_and_b32', t2, '15', L)
    A('v_xor_b32', t2, t2, t1)
    A('v_lshlrev_b32', t0, '8', t0)
    A('v_add_u32', t0, s(sTmp), t0)
    for sidx in range(8):
        A('v_xor_b32', t3, str(2 * sidx), t2)
        A('v_lshl_add_u32', v(vKa + sidx), t3, '4', t0)
    A('v_bfe_u32', t0, L, '2', '2')
    A('v_and_b32', t2, '3', L)
    A('v_bfe_u32', t3, L, '4', '1')
    A('v_lshl_add_u32', t4, t1, '2', t0)
    A('v_lshlrev_b32', t4, '8', t4)
    A('v_lshl_add_u32', t4, t3, '5', t4)
    A('v_lshl_add_u32', t4, t2, '3', t4)
    A('v_add_u32', t4, s(sTmp), t4)
    for t in range(4):
        A('v_xor_b32', t5, str(t), t0)
        A('v_lshl_add_u32', v(vVa + t), t5, '6', t4)
    for r in range(64):
        A('v_mov_b32', v(vO + r), '0')
    vC = vP
    for r in range(16):
        A('v_mov_b32', v(vC + r), '0')
    A('v_mov_b32', v(vL), '0')
    A('v_mov_b32', v(vM), '0')
    sLo = 67
    A('s_mov_b32', s(sThr), '0xff800000')
    A('s_mov_b32', s(sLo), '0xff800000')
    A('s_mov_b32', s(sIt), '0')

    lg = Cnt(A)
    KBUF = [0, 32768]; VBUF = [16384, 49152]
    def kread(par, k):
        u, sidx = k >> 3, k & 7
        A('ds_read_b128', v(vF + 4 * (k % 8), 4), v(vKa + sidx), mods=f'offset:{KBUF[par] + u * 8192}')
        lg.issue(('K', k))
    def vslot(k):
        return (8 + k) % 12
    def vread(par, k):
        e, t = k >> 2, k & 3
        for h2 in range(2):
            A('ds_read_b64_tr_b16', v(vF + 4 * vslot(k) + 2 * h2, 2), v(vVa + t), mods=f'offset:{VBUF[par] + (16 * e + 8 * h2) * 256}')
            lg.issue(('V', k))

    A.waitcnt(vm=9 if opt.get('wotouch', True) else 8)
    A('s_barrier')
    A('s_cmp_eq_u32', s(sTeam), '0')
    A('s_cbranch_scc1', 'LF_S_nst')
    A('s_barrier')
    A.label('LF_S_nst')
    for k in range(4):
        kread(0, k)
    saved = list(lg.p)
    rare = []

    PVS = opt.get('pvs', 8)
    def tile_loop(team):
        A.label(f'LF_Sloop{team}')
        for par in range(2):
            kslot, vsl = 2 * par, 2 * par + 1
            mx = v(vt[0]); mx2 = v(vt[1])
            def max_items(u, first):
                it = []
                base = vS + 16 * u
                if first:
                    it.append(lambda: A('v_max3_f32', mx, v(base), v(base + 1), v(base + 2)))
                    rest = list(range(3, 16))
                else:
                    rest = list(range(0, 16))
                while len(rest) >= 2:
                    a, b = rest[0], rest[1]; rest = rest[2:]
                    it.append(lambda a=a, b=b: A('v_max3_f32', mx, mx, v(base + a), v(base + b)))
                if rest:
                    a = rest[0]
                    it.append(lambda a=a: A('v_max_f32', mx, mx, v(base + a)))
                return it
            m0items = max_items(0, True)
            dq = dma_parts(2 * (1 - par) + 1)
            kread(par, 4); kread(par, 5)
            for k in range(16):
                u, sidx = k >> 3, k & 7
                if k % 2 == 0:
                    lg.wait(('K', min(k + 1, 15)))
                if k == 12:
                    lg.wait(('K', 15))
                    A.waitcnt(vm=8)
                    A('s_barrier')
                    assert not dq
                    dq = dma_parts(kslot)
                acc = v(vS + 16 * u, 16)
                A('v_mfma_f32_32x32x16_bf16', acc, v(vF + 4 * (k % 8), 4), v(vQ0 + 4 * sidx, 4), v(vC, 16) if sidx == 0 else acc)
                if k + 6 < 16:
                    kread(par, k + 6)
                if k >= 12:
                    vread(par, k - 12)
                if k in (1, 3, 5, 7, 14):
                    dq.pop(0)()
                if k >= 11 and m0items:
                    m0items.pop(0)()
                    if m0items: m0items.pop(0)()
            for it in m0items:
                it()
            vread(par, 4); vread(par, 5); vread(par, 6)
            for it in max_items(1, False):
                it()
            A('v_mov_b32', mx2, mx)
            A('v_permlane32_swap_b32', mx, mx2)
            A('v_max_f32', mx, mx, mx2)
            A('v_cmp_lt_f32', 'vcc', s(sThr), mx)
            lr, lb = f'LF_rare{team}{par}', f'LF_back{team}{par}'
            A('s_cbranch_vccnz', lr)
            A.label(lb)
            rare.append((lr, lb))
            def p_items(e):
                it = []
                base = vS + 8 * e
                for r in range(8):
                    it.append(lambda r=r: A('v_exp_f32', v(base + r), v(base + r)))
                for r in range(8):
                    acc = vL if r % 2 == 0 else vM
                    it.append(lambda r=r, acc=acc: A('v_add_f32', v(acc), v(acc), v(base + r)))
                for i in range(4):
                    it.append(lambda i=i: A('v_cvt_pk_bf16_f32', v(base + i), v(base + 2 * i), v(base + 2 * i + 1)))
                return it
            for it in p_items(0):
                it()
            nxt = 7
            for k in range(16):
                e, t = k >> 2, k & 3
                if k == PVS:
                    lg.wait(('V', 15))
                    A.waitcnt(vm=8)
                    A('s_barrier')
                elif k % 2 == 0:
                    lg.wait(('V', k + 1))
                acc = v(vO + 16 * t, 16)
                A('v_mfma_f32_32x32x16_bf16', acc, v(vF + 4 * vslot(k), 4), v(vS + 8 * e, 4), acc)
                n_rd = 2 if k < 4 else 1
                for _ in range(n_rd):
                    if nxt < 16 and (nxt < 12 or nxt - 12 <= k):
                        while len(lg.p) > 13:
                            lg.wait(lg.p[1])
                        vread(par, nxt); nxt += 1
                if k in (1, 4, 6):
                    dq.pop(0)()
                if k >= 12:
                    kread(1 - par, k - 12)
                if e < 3:
                    items = p_items(e + 1)
                    for it in items[5 * t:5 * t + 5]: it()
            assert nxt == 16
            assert not dq
            assert lg.p == saved, (lg.p, saved)
        A('s_add_u32', s(sIt), s(sIt), '1')
        A('s_cmp_lt_u32', s(sIt), '4')
        A('s_cbranch_scc1', f'LF_Sloop{team}')
    tile_loop(0)
    A('s_cmp_lg_u32', s(sTeam), '0')
    A('s_cbranch_scc1', 'LF_S_nst2')
    A('s_barrier')
    A.label('LF_S_nst2')
    l2 = v(vt[0]); inv = v(vt[1])
    A('v_add_f32', v(vL), v(vL), v(vM))
    A('v_mov_b32', l2, v(vL))
    A('v_permlane32_swap_b32', v(vL), l2)
    A('v_add_f32', l2, l2, v(vL))
    A('v_rcp_f32', inv, l2)
    for t in range(4):
        for r in range(16):
            A('v_mul_f32', v(vO + 16 * t + r), v(vO + 16 * t + r), inv)
        for a in range(2):
            for i, r0 in enumerate((4 * a, 4 * a + 2, 8 + 4 * a, 8 + 4 * a + 2)):
                A('v_cvt_pk_bf16_f32', v(vQ0 + 8 * t + 4 * a + i), v(vO + 16 * t + r0), v(vO + 16 * t + r0 + 1))
    A.waitcnt(lgkm=0)
    A('s_cmp_lg_u32', s(sNext), '0')
    A('s_cbranch_scc1', 'LF_S_nowait')
    A.waitcnt(vm=0)
    A.label('LF_S_nowait')
    ret(A)
    for lr, lb in rare:
        mx = v(vt[0]); delta = v(vt[2]); alpha = v(vt[3])
        A.label(lr)
        A('v_max_f32', delta, s(sLo), mx)
        A('v_max_f32', alpha, '0', delta)
        A('v_sub_f32', alpha, '0', alpha)
        A('v_exp_f32', alpha, alpha)
        for r in range(32):
            A('v_sub_f32', v(vS + r), v(vS + r), delta)
        for r in range(16):
            A('v_sub_f32', v(vC + r), v(vC + r), delta)
        A('v_mul_f32', v(vL), v(vL), alpha)
        A('v_mul_f32', v(vM), v(vM), alpha)
        for r in range(64):
            A('v_mul_f32', v(vO + r), v(vO + r), alpha)
        A('s_mov_b32', s(sThr), f32(8.0))
        A('s_mov_b32', s(sLo), '0')
        A('s_branch', lb)


def phase_o(A, opt):
    L = v(vLane)
    vOd, vOe, vOa, vOx, vOb, vOw = 4, 8, 9, 13, 14, 15
    t0, t1, t2, t3, t4, t5 = [v(x) for x in range(20, 26)]
    vAcc, vFA, vFB = vW, vW + 80, vW + 120
    OT = 98304
    RING = 10240
    sM0R = sM0O
    A.label('LF_O')
    A('v_lshrrev_b32', t0, '3', L)
    A('v_and_b32', t1, '7', L)
    A('v_bfe_u32', t2, L, '4', '2')
    A('v_lshlrev_b32', t2, '1', t2)
    A('v_xor_b32', t1, t1, t2)
    A('v_mul_u32_u24', t0, '1152', t0)
    A('v_lshl_add_u32', v(vOd), t1, '4', t0)
    for jj in range(1, 4):
        A('v_add_u32', v(vOd + jj), str(jj * (8 * 1152 - 1024)), v(vOd))
    A('v_lshrrev_b32', t0, '1', L)
    A('v_and_b32', t1, '1', L)
    A('v_mul_u32_u24', t0, '1152', t0)
    A('v_lshl_add_u32', t0, t1, '4', t0)
    A('s_mul_i32', s(sTmp), s(sWave), '96')
    A('s_sub_u32', s(sTmp), '1024', s(sTmp))
    A('v_add_u32', v(vOe), s(sTmp), t0)
    A('s_lshl_b32', s(sWoBase), s(sG), '1')
    A('s_add_u32', s(sWoBase), s(sWoBase), s(sR))
    A('s_mul_i32', s(sWoBase), s(sWoBase), str(512 * 1152))
    A('s_lshl_b32', s(sTmp), s(sWave), '7')
    A('s_add_u32', s(sWoff), s(sWoBase), s(sTmp))
    A('s_mov_b32', s(sCk), '0')
    A('s_mul_i32', s(sM0R), s(sWave), str(RING))
    def wo_parts(st, team):
        parts = []
        for jj in range(4):
            def f(jj=jj):
                if jj == 0:
                    A('s_add_u32', 'm0', s(sM0R), str(st * 5120))
                A('buffer_load_dwordx4', v(vOd + jj), s(sWo, 4), s(sWoff), mods=f'offen offset:{jj*1024} lds')
                if jj == 3:
                    if team == 0:
                        A('s_add_u32', 'm0', s(sM0R), str(st * 5120 + 4096))
                        A('buffer_load_dwordx4', v(vOe), s(sWo, 4), s(sWoff), mods='offen lds')
                    A('s_add_u32', s(sCk), s(sCk), '1')
                    A('s_add_u32', s(sWoff), s(sWoff), str(32 * 1152))
                    A('s_cmp_eq_u32', s(sCk), '16')
                    A('s_cselect_b32', s(sWoff), OOB, s(sWoff))
            parts.append(f)
        return parts
    A('s_barrier')
    A('s_cmp_lg_u32', s(sTeam), '0')
    A('s_cbranch_scc1', 'LF_O_p1')
    for d in wo_parts(0, 0) + wo_parts(1, 0): d()
    A('s_branch', 'LF_O_p2')
    A.label('LF_O_p1')
    for d in wo_parts(0, 1) + wo_parts(1, 1): d()
    A.label('LF_O_p2')
    A('v_bfe_u32', t0, L, '4', '1')
    A('v_and_b32', t2, '15', L)
    A('v_lshrrev_b32', t1, '5', L)
    A('v_lshlrev_b32', t2, '4', t2)
    A('v_lshl_add_u32', t2, t0, '10', t2)
    A('v_lshl_add_u32', t2, t1, '8', t2)
    A('s_lshr_b32', s(sTmp), s(sWave), '1')
    A('s_lshl_b32', s(sTmp), s(sTmp), '14')
    A('s_and_b32', s(sTmp2), s(sWave), '1')
    A('s_lshl_b32', s(sTmp2), s(sTmp2), '11')
    A('s_add_u32', s(sTmp), s(sTmp), s(sTmp2))
    A('s_add_u32', s(sTmp), s(sTmp), str(OT))
    A('v_add_u32', v(vOw), s(sTmp), t2)
    for t in range(4):
        for a in range(2):
            A('ds_write_b128', v(vOw), v(vQ0 + 8 * t + 4 * a, 4), mods=f'offset:{t * 4096 + a * 512}')
    A('v_lshlrev_b32', t0, '4', L)
    A('v_add_u32', v(vOb), str(OT), t0)
    A('v_lshrrev_b32', t0, '2', L)
    A('v_bfe_u32', t1, L, '3', '2')
    A('v_and_b32', t2, '3', L)
    A('v_lshlrev_b32', t3, '7', t0)
    A('v_lshl_add_u32', t3, t2, '3', t3)
    A('v_add_u32', t3, s(sM0R), t3)
    for tn in range(4):
        A('v_xor_b32', t4, str(tn), t1)
        A('v_lshl_add_u32', v(vOa + tn), t4, '5', t3)
    A('v_lshlrev_b32', t3, '5', t0)
    A('v_lshl_add_u32', t3, t2, '3', t3)
    A('v_add_u32', v(vOx), s(sM0R), t3)
    A('s_cmp_eq_u32', s(sFlagZ), '0')
    A('s_cbranch_scc1', 'LF_O_nz')
    for r in range(80):
        A('v_mov_b32', v(vAcc + r), '0')
    A.label('LF_O_nz')
    A.waitcnt(lgkm=0)
    A('s_barrier')

    def body(team):
        nt = 5 if team == 0 else 4
        G = nt
        lg = Cnt(A)
        def aread(st, tn):
            for e in range(2):
                if tn < 4:
                    A('ds_read_b64_tr_b16', v(vFA + 20 * st + 4 * tn + 2 * e, 2), v(vOa + tn), mods=f'offset:{st * 5120 + e * 2048}')
                else:
                    A('ds_read_b64_tr_b16', v(vFA + 20 * st + 16 + 2 * e, 2), v(vOx), mods=f'offset:{st * 5120 + 4096 + e * 512}')
                lg.issue(('A', st, tn))
        def bread(st, qt, off):
            A('ds_read_b128', v(vFB + 16 * st + 4 * qt, 4), v(vOb), mods=f'offset:{off + qt * 1024}')
            lg.issue(('B', st, qt))
        A.waitcnt(vm=G)
        for tn in range(nt): aread(0, tn)
        for qt in range(4): bread(0, qt, 0)
        A.waitcnt(lgkm=0); lg.p = []
        for d in wo_parts(0, team): d()
        A('s_mov_b32', s(sIt), '0')
        A.label(f'LF_Oloop{team}')
        for st in range(2):
            A.waitcnt(vm=G)
            rd = [(lambda tn=tn: aread(1 - st, tn)) for tn in range(nt)] + [(lambda qt=qt: bread(1 - st, qt, 4096 * (st + 1))) for qt in range(4)]
            dma = wo_parts(1 - st, team)
            n = 0
            for tn in range(nt):
                for qt in range(4):
                    acc = v(vAcc + (tn * 4 + qt) * 4, 4)
                    A('v_mfma_f32_16x16x32_bf16', acc, v(vFA + 20 * st + 4 * tn, 4), v(vFB + 16 * st + 4 * qt, 4), acc)
                    n += 1
                    if rd:
                        rd.pop(0)()
                    elif dma and n >= nt + 6 and (n - nt) % 2 == 0:
                        if len(dma) == 4:
                            lg.wait(('A', 1 - st, nt - 1))
                        dma.pop(0)()
            for d in dma: d()
            A.waitcnt(lgkm=0); lg.p = []
        A('v_add_u32', v(vOb), '8192', v(vOb))
        A('s_add_u32', s(sIt), s(sIt), '1')
        A('s_cmp_lt_u32', s(sIt), '8')
        A('s_cbranch_scc1', f'LF_Oloop{team}')
        A.waitcnt(vm=0)
        A('s_cmp_eq_u32', s(sFlagS), '0')
        A('s_cbranch_scc1', 'LF_O_ns')
        A('v_lshlrev_b32', t0, '4', L)
        A('s_lshl_b32', s(sTmp), s(sWave), '13')
        A('s_add_u32', s(sTmp), s(sTmp), s(sPoff))
        for tn in range(nt):
            for qp in range(2):
                d = vFA + 4 * (2 * tn + qp)
                for k in range(2):
                    a = vAcc + (tn * 4 + 2 * qp + k) * 4
                    A('v_cvt_pk_bf16_f32', v(d + 2 * k), v(a), v(a + 1))
                    A('v_cvt_pk_bf16_f32', v(d + 2 * k + 1), v(a + 2), v(a + 3))
                if tn == 2 and qp == 0:
                    A('s_add_u32', s(sTmp), s(sTmp), '4096')
                if tn == 4 and qp == 0:
                    A('s_lshl_b32', s(sTmp), s(sWave), '11')
                    A('s_add_u32', s(sTmp), s(sTmp), s(sPoff))
                    A('s_add_u32', s(sTmp), s(sTmp), '65536')
                A('buffer_store_dwordx4', v(d, 4), t0, s(sWS, 4), s(sTmp), mods=f'offen offset:{((tn % 2) * 2 + qp) * 1024} {opt.get("pflags", "")}')
    A('s_cmp_lg_u32', s(sTeam), '0')
    A('s_cbranch_scc1', 'LF_O_b1')
    body(0)
    A('s_branch', 'LF_O_ns')
    A.label('LF_O_b1')
    body(1)
    A.label('LF_O_ns')
    ret(A)


def reduce_kernel(A, opt):
    kn = 'reduce_kernel'
    A.raw('.globl %s\n.p2align 8\n.type %s,@function' % (kn, kn))
    A.label(kn)
    A('s_cmp_ge_u32', 's2', str(64 * 18))
    A('s_cbranch_scc1', 'LR_done')
    A('s_load_dwordx2', s(16, 2), s(0, 2), '80')
    A('s_load_dwordx2', s(18, 2), s(0, 2), '96')
    A('s_mul_i32', s(20), 's2', '3641')
    A('s_lshr_b32', s(20), s(20), '16')
    A('s_mul_i32', s(21), s(20), '18')
    A('s_sub_u32', s(21), 's2', s(21))
    A('v_lshrrev_b32', v(1), '6', v(0))
    A('v_readfirstlane_b32', s(22), v(1))
    A('s_lshl_b32', s(23), s(21), '2')
    A('s_add_u32', s(23), s(23), s(22))
    A('s_lshr_b32', s(24), s(23), '1')
    A('s_and_b32', s(25), s(23), '1')
    A('v_and_b32', v(1), '63', v(0))
    A('v_lshlrev_b32', v(2), '4', v(1))
    A.waitcnt(lgkm=0)
    srd(A, 4, 16, OUT_BYTES)
    srd(A, 8, 18, WS_BYTES)
    A('s_mul_i32', s(26), s(20), str(8 * PART))
    A('s_lshl_b32', s(27), s(23), '10')
    A('s_add_u32', s(26), s(26), s(27))
    A('s_and_b32', s(28), s(20), '1')
    for g in range(4):
        A('s_add_u32', s(30), s(26), str(g * 2 * PART))
        A('buffer_load_dwordx4', v(8 + 4 * g, 4), v(2), s(8, 4), s(30), mods='offen ' + opt.get('rflags', ''))
    A('s_and_b32', s(31), s(20), '31')
    A('s_lshr_b32', s(32), s(20), '5')
    A('s_lshl_b32', s(31), s(31), '6')
    A('s_lshl_b32', s(33), s(25), '5')
    A('s_add_u32', s(31), s(31), s(33))
    A('s_mul_i32', s(31), s(31), '2304')
    A('s_mul_i32', s(32), s(32), '1152')
    A('s_add_u32', s(31), s(31), s(32))
    A('s_lshl_b32', s(33), s(24), '5')
    A('s_add_u32', s(31), s(31), s(33))
    A('v_and_b32', v(3), '15', v(1))
    A('v_mul_u32_u24', v(3), '2304', v(3))
    A('v_lshrrev_b32', v(4), '4', v(1))
    A('v_lshl_add_u32', v(3), v(4), '3', v(3))
    for k in range(4):
        A.waitcnt(vm=3 - k)
        for d in range(4):
            src = v(8 + 4 * k + d)
            if k == 0:
                A('v_lshlrev_b32', v(32 + 2 * d), '16', src)
                A('v_and_b32', v(33 + 2 * d), '0xffff0000', src)
            else:
                A('v_lshlrev_b32', v(40), '16', src)
                A('v_and_b32', v(41), '0xffff0000', src)
                A('v_add_f32', v(32 + 2 * d), v(32 + 2 * d), v(40))
                A('v_add_f32', v(33 + 2 * d), v(33 + 2 * d), v(41))
    for d in range(4):
        A('v_cvt_pk_bf16_f32', v(44 + d), v(32 + 2 * d), v(33 + 2 * d))
    A('buffer_store_dwordx2', v(44, 2), v(3), s(4, 4), s(31), mods='offen ' + opt.get('oflags', ''))
    A('s_add_u32', s(31), s(31), str(16 * 2304))
    A('buffer_store_dwordx2', v(46, 2), v(3), s(4, 4), s(31), mods='offen ' + opt.get('oflags', ''))
    A.label('LR_done')
    A('s_endpgm')
    return kn


def kd(name, vgpr, sgpr):
    return f'''.amdhsa_kernel {name}
  .amdhsa_next_free_vgpr {vgpr}
  .amdhsa_next_free_sgpr {sgpr}
  .amdhsa_accum_offset {vgpr}
  .amdhsa_group_segment_fixed_size 0
  .amdhsa_kernarg_size 104
  .amdhsa_user_sgpr_count 2
  .amdhsa_user_sgpr_kernarg_segment_ptr 1
  .amdhsa_system_sgpr_workgroup_id_x 1
.end_amdhsa_kernel
'''

def generate(opt):
    A = Asm()
    ka = fused_kernel(A, opt)
    kb = reduce_kernel(A, opt)
    errs = A.check_branches()
    for e in errs:
        print('HAZARD:', e, file=sys.stderr)
    assert not errs
    hdr = [l for l in HDR if l.startswith(';') and '@launch' not in l]
    out = '\n'.join(hdr) + '\n'
    out += f'; @launch kernel={ka} grid=(256,1,1) block=(512,1,1) lds=163840\n'
    out += f'; @launch kernel={kb} grid=(1152,1,1) block=(256,1,1) lds=0\n'
    out += '.amdgcn_target "amdgcn-amd-amdhsa--gfx950"\n.text\n'
    out += A.text().replace('CODEBYTES', 'LCODE_END-fused_kernel')
    out += 'LCODE_END:\n'
    out += '.section .rodata,"a"\n.p2align 6\n'
    out += kd(ka, 256, 102)
    out += '.p2align 6\n'
    out += kd(kb, 48, 40)
    return out

if __name__ == '__main__':
    opt = {}
    for a in sys.argv[2:]:
        k, val = a.split('=')
        opt[k] = eval(val)
    txt = generate(opt)
    open(sys.argv[1], 'w').write(txt)
    print('wrote', sys.argv[1], len(txt))
```

```python
import sys, math, struct
sys.path.insert(0, 'gen')
from asmlib import *

NAME = 'concat_heads__gqa_block_cached__gqa_block_cached__near_ridge'
HDR = open('cdna_kernels/' + NAME + '.s.ref').read().split('\n')

X_BYTES = 32 * 64 * 576 * 2
KV_BYTES = 32 * 16 * 512 * 128 * 2
W_BYTES = 576 * 4096 * 2
OUT_BYTES = 32 * 64 * 1152 * 2
PART = 64 * 576 * 2
WS_BYTES = 64 * 8 * PART
OOB = '0x7f000000'

def f32(x):
    return hex(int.from_bytes(struct.pack('<f', x), 'little'))

class Cnt:
    def __init__(self, A, maxn=15):
        self.A = A; self.p = []; self.maxn = maxn
    def issue(self, tag):
        self.p.append(tag)
        assert len(self.p) <= self.maxn, len(self.p)
    def wait(self, tag):
        idx = None
        for k, t in enumerate(self.p):
            if t == tag:
                idx = k
        if idx is None:
            return
        self.A.waitcnt(lgkm=len(self.p) - idx - 1)
        self.p = self.p[idx + 1:]

def srd(A, d, plo, nbytes):
    A('s_mov_b32', s(d), s(plo))
    A('s_and_b32', s(d + 1), s(plo + 1), '0xffff')
    A('s_mov_b32', s(d + 2), hex(nbytes))
    A('s_mov_b32', s(d + 3), '0x00020000')

sX, sK, sV, sWq, sWo, sWS = 4, 8, 12, 16, 20, 24
sWave, sTeam, sTmp, sTmp2, sType, sC, sThr = 28, 29, 30, 31, 32, 33, 34
sR, sIt, sT, sKVoff, sKVbase, sM0KV = 35, 36, 37, 38, 39, 40
sWbase, sXbase, sWoff, sXoff, sCk, sXk = 41, 42, 43, 44, 45, 46
sG, sB, sP, sW3 = 47, 48, 49, 50
sM0W, sM0X, sWoBase, sPoff, sFlagZ, sFlagS = 51, 52, 53, 54, 55, 56
sRet = 58
sM0O = 60
sLd = 70
sStamp = 72
vTid, vLane = 0, 1
vA0 = 4
vQ0, vQ1 = 32, 64
vKd, vVd = 27, 31
sKoff, sVoff, sKn, sVn, sPre, sNext, sJump = 38, 57, 37, 63, 64, 65, 66
vW = 96


def fused_kernel(A, opt):
    kn = 'fused_kernel'
    A.raw('.globl %s\n.p2align 8\n.type %s,@function' % (kn, kn))
    A.label(kn)
    L = v(vLane)
    nst = [0]
    def stamp():
        if opt.get('stamp'):
            A('s_memrealtime', s(sStamp + 2 * nst[0], 2))
            A('s_memtime', s(70, 2))
            A.waitcnt(lgkm=0)
            A('s_mov_b32', s(sStamp + 2 * nst[0] + 1), s(70))
            nst[0] += 1

    A('s_cmp_ge_u32', 's2', '256')
    A('s_cbranch_scc1', 'LF_done')
    if opt.get('codewarm', False):
        A('s_getpc_b64', s(96, 2))
        A('s_and_b32', s(96), s(96), '0xffffff00')
        A('s_and_b32', s(97), s(97), '0xffff')
        A('s_mov_b32', s(98), 'CODEBYTES')
        A('s_mov_b32', s(99), '0x00020000')
        A('v_lshlrev_b32', v(2), '7', v(vTid))
        A('buffer_load_dword', v(3), v(2), s(96, 4), '0', mods='offen ' + opt.get('cflags', ''))
    A('s_load_dwordx8', s(72, 8), s(0, 2), '0')
    A('s_load_dwordx2', s(80, 2), s(0, 2), '32')
    A('s_load_dwordx8', s(84, 8), s(0, 2), '40')
    A('s_load_dwordx2', s(92, 2), s(0, 2), '72')
    A('s_load_dwordx2', s(94, 2), s(0, 2), '96')
    A('s_and_b32', s(sTmp), 's2', '7')
    A('s_lshr_b32', s(sP), s(sTmp), '2')
    A('s_and_b32', s(sG), s(sTmp), '3')
    A('s_lshr_b32', s(sB), 's2', '3')
    A('s_add_u32', s(sType), s(sB), s(sG))
    A('s_and_b32', s(sType), s(sType), '1')
    if opt.get('typemode') == 'p': A('s_mov_b32', s(sType), s(sP))
    if opt.get('typemode') == 'g': A('s_and_b32', s(sType), s(sG), '1')
    A('v_and_b32', L, '63', v(vTid))
    A('v_lshrrev_b32', v(2), '6', v(vTid))
    A('v_readfirstlane_b32', s(sWave), v(2))
    A('s_lshr_b32', s(sTeam), s(sWave), '2')
    A('s_and_b32', s(sW3), s(sWave), '3')
    A('s_mov_b32', s(sC), f32((128 ** -0.5) * math.log2(math.e)))
    A('s_mov_b32', s(sThr), f32(8.0 / ((128 ** -0.5) * math.log2(math.e))))
    A.waitcnt(lgkm=0)
    A('s_cmp_eq_u32', s(sP), '0')
    for k in range(4):
        A('s_cselect_b64', s(72 + 2 * k, 2), s(72 + 2 * k, 2), s(84 + 2 * k, 2))
    A('s_cselect_b64', s(80, 2), s(80, 2), s(92, 2))
    srd(A, sX, 72, X_BYTES)
    srd(A, sK, 74, KV_BYTES)
    srd(A, sV, 76, KV_BYTES)
    srd(A, sWq, 78, W_BYTES)
    srd(A, sWo, 80, W_BYTES)
    srd(A, sWS, 94, (0x10000000 if opt.get('stamp') else WS_BYTES))
    A('s_lshl_b32', s(sKVbase), s(sB), '4')
    A('s_lshl_b32', s(sTmp), s(sG), '2')
    A('s_add_u32', s(sKVbase), s(sKVbase), s(sTmp))
    A('s_add_u32', s(sKVbase), s(sKVbase), s(sTeam))
    A('s_lshl_b32', s(sKVbase), s(sKVbase), '17')
    A('s_lshl_b32', s(sTmp), s(sW3), '12')
    A('s_add_u32', s(sKVbase), s(sKVbase), s(sTmp))
    A('s_lshl_b32', s(sM0KV), s(sTeam), '16')
    A('s_add_u32', s(sM0KV), s(sM0KV), s(sTmp))
    A('s_lshl_b32', s(sM0W), s(sWave), '12')
    A('s_lshl_b32', s(sM0X), s(sWave), '10')
    A('s_lshl_b32', s(sXbase), s(sB), '6')
    A('s_lshl_b32', s(sTmp), s(sWave), '3')
    A('s_add_u32', s(sXbase), s(sXbase), s(sTmp))
    A('s_mulk_i32', s(sXbase), '1152')
    A('s_lshl_b32', s(sPoff), s(sP), '5')
    A('s_add_u32', s(sPoff), s(sPoff), s(sB))
    A('s_lshl_b32', s(sPoff), s(sPoff), '2')
    A('s_add_u32', s(sPoff), s(sPoff), s(sG))
    A('s_mul_i32', s(sPoff), s(sPoff), str(2 * PART))
    A('v_lshrrev_b32', v(4), '4', L)
    A('v_and_b32', v(5), '15', L)
    for jj in range(4):
        A('v_add_u32', v(6), str(4 * jj), v(4))
        A('v_xor_b32', v(6), v(6), v(5))
        A('v_lshlrev_b32', v(6), '4', v(6))
        A('v_lshl_add_u32', v(vKd + jj), v(4), '8', v(6))
    A('v_lshlrev_b32', v(6), '2', v(4))
    A('v_xor_b32', v(6), v(6), v(5))
    A('v_lshlrev_b32', v(6), '4', v(6))
    A('v_lshl_add_u32', v(vVd), v(4), '8', v(6))
    if opt.get('q0touch', False):
        A('s_lshr_b32', s(sTmp2), s(sB), '1')
        A('s_lshl_b32', s(sTmp2), s(sTmp2), '3')
        A('s_add_u32', s(sTmp2), s(sTmp2), s(sWave))
        A('s_mul_i32', s(sTmp2), s(sTmp2), '36')
        A('v_min_u32', v(4), '35', L)
        A('v_add_u32', v(4), s(sTmp2), v(4))
        A('v_and_b32', v(5), '7', v(4))
        A('v_lshrrev_b32', v(4), '3', v(4))
        A('v_lshlrev_b32', v(4), '13', v(4))
        A('v_lshl_add_u32', v(4), v(5), '7', v(4))
        A('s_lshl_b32', s(sTmp), s(sG), '1')
        A('s_add_u32', s(sTmp), s(sTmp), s(sType))
        A('s_lshl_b32', s(sTmp), s(sTmp), '10')
        A('buffer_load_dword', v(3), v(4), s(sWq, 4), s(sTmp), mods='offen nt')
        A('v_lshlrev_b32', v(4), '7', L)
        A('buffer_load_dword', v(3), v(4), s(sX, 4), s(sXbase), mods='offen nt')
        A('buffer_load_dword', v(3), v(4), s(sX, 4), s(sXbase), mods='offen offset:1024 nt')
    if opt.get('tlbwarm', False):
        A('s_cmp_lg_u32', s(sWave), '0')
        A('s_cbranch_scc1', 'LF_ntw')
        A('v_lshlrev_b32', v(4), '13', L)
        A('buffer_load_dword', v(3), v(4), s(sK, 4), s(sKVbase), mods='offen nt')
        A('buffer_load_dword', v(3), v(4), s(sV, 4), s(sKVbase), mods='offen nt')
        A.label('LF_ntw')
    stamp()

    def kvinit(r):
        A('s_add_u32', s(sKoff), s(sKVbase), str(r << 18))
        if opt.get('kv_oob'): A('s_mov_b32', s(sKoff), '0x70000000')
        A('s_mov_b32', s(sVoff), s(sKoff))
        A('s_mov_b32', s(sKn), '0')
        A('s_mov_b32', s(sVn), '0')
    def call(lbl):
        A('s_call_b64', s(sRet, 2), lbl)
        A('s_nop', '7'); A('s_nop', '7')
    def setr(r):
        A('s_mov_b32', s(sR), str(r))
    def mov32(dst, src):
        for i in range(32):
            A('v_mov_b32', v(dst + i), v(src + i))
    def swap32():
        for i in range(32):
            A('v_swap_b32', v(vQ0 + i), v(vQ1 + i))

    A.label('LF_G2')
    nst[0] = 1
    setr(1); A('s_mov_b32', s(sPre), '0'); call('LF_Q'); stamp()
    mov32(vQ1, vQ0)
    setr(0); kvinit(0)
    A('s_mov_b32', s(sPre), '1'); A('s_mov_b32', s(sNext), '1'); A('s_mov_b32', s(sJump), '0x20000')
    call('LF_Q'); stamp()
    call('LF_S'); stamp()
    swap32()
    setr(1)
    A('s_mov_b32', s(sPre), '3'); A('s_mov_b32', s(sNext), '0'); A('s_mov_b32', s(sJump), '0x40000000')
    call('LF_S'); stamp()
    A.label('LF_tail')
    A('s_mov_b32', s(sFlagZ), '1'); A('s_mov_b32', s(sFlagS), '0')
    call('LF_O'); stamp()
    mov32(vQ0, vQ1)
    setr(0)
    A('s_mov_b32', s(sFlagZ), '0'); A('s_mov_b32', s(sFlagS), '1')
    call('LF_O'); stamp()
    A.label('LF_end')
    if opt.get('stamp'):
        A('s_lshl_b32', s(sTmp), 's2', '3')
        A('s_add_u32', s(sTmp), s(sTmp), s(sWave))
        A('s_lshl_b32', s(sTmp), s(sTmp), '6')
        A('s_add_u32', s(sTmp), s(sTmp), hex(200 << 20))
        A('v_mov_b32', v(6), '0')
        A('s_mov_b64', 'exec', '1')
        for i in range(7):
            A('v_mov_b32', v(4), s(sStamp + 2 * i))
            A('v_mov_b32', v(5), s(sStamp + 2 * i + 1))
            A('buffer_store_dwordx2', v(4, 2), v(6), s(sWS, 4), s(sTmp), mods=f'offen offset:{8*i}')
            A.waitcnt(vm=0)
    A.label('LF_done')
    A('s_endpgm')

    phase_q(A, opt)
    phase_s(A, opt)
    phase_o(A, opt)
    return kn


def kv_parts(A, opt, slot):
    kvflags = opt.get('kvflags', 'nt')
    parts = []
    isk = slot % 2 == 0
    so, sn = (sKoff, sKn) if isk else (sVoff, sVn)
    for jj in range(4):
        def f(jj=jj):
            if jj == 0:
                A('s_add_u32', 'm0', s(sM0KV), str(slot * 16384))
            if isk:
                A('buffer_load_dwordx4', v(vKd + jj), s(sK, 4), s(so), mods=f'offen offset:{jj*1024} {kvflags} lds')
            else:
                A('buffer_load_dwordx4', v(vVd), s(sV, 4), s(so), mods=f'offen offset:{jj*1024} {kvflags} lds')
            if jj == 3:
                A('s_add_u32', s(sn), s(sn), '1')
                A('s_add_u32', s(so), s(so), '0x4000')
                A('s_and_b32', s(sTmp2), s(sn), '7')
                A('s_cselect_b32', s(sTmp), '0', s(sJump))
                A('s_add_u32', s(so), s(so), s(sTmp))
        parts.append(f)
    return parts


def ret(A):
    A('s_nop', '7'); A('s_nop', '7')
    A('s_setpc_b64', s(sRet, 2))


def phase_q(A, opt):
    L = v(vLane)
    vWd, vWa, vXd, vXa = 4, 8, 12, 13
    t0, t1, t2, t3, t4, t5 = [v(x) for x in range(21, 27)]
    vAcc, vFA, vFB = vW, vW + 64, vW + 96
    WST = [98304, 16384, 131072]
    XSL = [49152, 57344, 81920]
    A.label('LF_Q')
    for jj in range(4):
        A('v_xor_b32', t0, str(4 * jj), L)
        A('v_lshlrev_b32', t0, '4', t0)
        A('v_add_u32', v(vWd + jj), str(jj * (8192 - 1024)), t0)
    A('s_and_b32', s(sTmp), s(sWave), '1')
    A('s_lshl_b32', s(sTmp), s(sTmp), '2')
    A('v_lshrrev_b32', t0, '4', L)
    A('v_add_u32', t0, s(sTmp), t0)
    A('v_and_b32', t1, '7', L)
    A('v_xor_b32', t0, t0, t1)
    A('v_lshlrev_b32', t0, '4', t0)
    A('v_lshrrev_b32', t1, '3', L)
    A('v_mul_u32_u24', t1, '1152', t1)
    A('v_add_u32', v(vXd), t0, t1)
    A('s_lshl_b32', s(sWbase), s(sG), '1')
    A('s_add_u32', s(sWbase), s(sWbase), s(sR))
    A('s_lshl_b32', s(sWbase), s(sWbase), '10')
    A('s_lshl_b32', s(sTmp), s(sWave), '15')
    A('s_add_u32', s(sWbase), s(sWbase), s(sTmp))
    A('s_mul_i32', s(sTmp), s(sB), '57')
    A('s_lshr_b32', s(sTmp), s(sTmp), '9')
    A('s_mul_i32', s(sTmp), s(sTmp), '9')
    A('s_sub_u32', s(sXk), s(sB), s(sTmp))
    A('s_lshl_b32', s(sCk), s(sXk), '1')

    def w_parts(st):
        parts = []
        for jj in range(4):
            def f(jj=jj):
                if jj == 0:
                    A('s_lshl_b32', s(sWoff), s(sCk), '18')
                    A('s_add_u32', s(sWoff), s(sWoff), s(sWbase))
                    A('s_add_u32', s(sCk), s(sCk), '1')
                    A('s_cmp_eq_u32', s(sCk), '18')
                    A('s_cselect_b32', s(sCk), '0', s(sCk))
                A('s_add_u32', 'm0', s(sM0W), str(WST[st]))
                A('buffer_load_dwordx4', v(vWd + jj), s(sWq, 4), s(sWoff), mods=f'offen offset:{jj*1024} {opt.get("wqflags", "")} lds')
            parts.append(f)
        return parts
    def x_part(sl):
        def f():
            A('s_lshl_b32', s(sXoff), s(sXk), '7')
            A('s_add_u32', s(sXoff), s(sXoff), s(sXbase))
            A('s_add_u32', s(sXk), s(sXk), '1')
            A('s_cmp_eq_u32', s(sXk), '9')
            A('s_cselect_b32', s(sXk), '0', s(sXk))
            A('s_add_u32', 'm0', s(sM0X), str(XSL[sl]))
            A('buffer_load_dwordx4', v(vXd), s(sX, 4), s(sXoff), mods='offen ' + opt.get('xflags', '') + ' lds')
        return [f]
    A('s_barrier')
    for d in x_part(0) + w_parts(0):
        d()
    A('v_bfe_u32', t0, L, '2', '2')
    A('v_lshrrev_b32', t1, '5', L)
    A('v_and_b32', t2, '1', L)
    A('v_bfe_u32', t3, L, '1', '1')
    A('v_lshl_add_u32', t2, t2, '1', t3)
    A('v_bfe_u32', t3, L, '4', '1')
    A('v_lshl_add_u32', t4, t1, '3', t0)
    A('v_lshlrev_b32', t4, '10', t4)
    A('v_lshl_add_u32', t4, t3, '5', t4)
    A('v_lshl_add_u32', t4, t2, '3', t4)
    A('s_lshr_b32', s(sTmp), s(sWave), '1')
    A('s_lshl_b32', s(sTmp), s(sTmp), '8')
    A('v_add_u32', t4, s(sTmp), t4)
    for t in range(4):
        A('v_xor_b32', t5, str(t), t0)
        A('v_lshl_add_u32', v(vWa + t), t5, '6', t4)
    vWa2 = 17
    for t in range(4):
        A('v_add_u32', v(vWa2 + t), '0x18000', v(vWa + t))
    A('v_and_b32', t0, '31', L)
    A('s_and_b32', s(sTmp), s(sWave), '1')
    A('s_lshl_b32', s(sTmp), s(sTmp), '5')
    A('v_add_u32', t0, s(sTmp), t0)
    A('v_bfe_u32', t2, L, '1', '3')
    A('v_xor_b32', t2, t2, t1)
    for s4 in range(4):
        A('v_xor_b32', t3, str(2 * s4), t2)
        A('v_lshlrev_b32', t3, '4', t3)
        A('v_lshl_add_u32', v(vXa + s4), t0, '7', t3)
        A('v_add_u32', v(vXa + s4), '49152', v(vXa + s4))
    for r in range(64):
        A('v_mov_b32', v(vAcc + r), '0')

    lg = Cnt(A)
    def reads(kk, part):
        c, sidx = (kk >> 1) % 3, kk & 1
        X, s4 = (kk >> 2) % 3, kk & 3
        par = kk & 1
        base = WST[c]
        if part == 'B':
            A('ds_read_b128', v(vFB + 4 * par, 4), v(vXa + s4), mods=f'offset:{XSL[X] - 49152}')
            lg.issue(('B', par))
        else:
            t = part
            for e in range(2):
                off = base + (16 * sidx + 4 * e) * 1024
                if base >= 98304:
                    A('ds_read_b64_tr_b16', v(vFA + 16 * par + 4 * t + 2 * e, 2), v(vWa2 + t), mods=f'offset:{off - 98304}')
                else:
                    A('ds_read_b64_tr_b16', v(vFA + 16 * par + 4 * t + 2 * e, 2), v(vWa + t), mods=f'offset:{off}')
                lg.issue(('A', par, t))
    def kstep(kk, nxt, sync, dma):
        par = kk & 1
        if sync is not None:
            A.waitcnt(vm=sync, lgkm=0); lg.p = []
            A('s_barrier')
        dma = list(dma)
        for t in range(4):
            lg.wait(('A', par, t)); lg.wait(('B', par))
            acc = v(vAcc + 16 * t, 16)
            A('v_mfma_f32_32x32x16_bf16', acc, v(vFA + 16 * par + 4 * t, 4), v(vFB + 4 * par, 4), acc)
            if nxt:
                if t == 0: reads(kk + 1, 'B'); reads(kk + 1, 0)
                elif t == 1: reads(kk + 1, 1); reads(kk + 1, 2)
                elif t == 2: reads(kk + 1, 3)
            if dma and t != 0:
                dma.pop(0)()
        return dma

    for d in w_parts(1) + x_part(1):
        d()
    A.waitcnt(vm=5)
    A('s_barrier')
    reads(0, 'B')
    for t in range(4): reads(0, t)
    for d in w_parts(2):
        d()
    saved = list(lg.p)
    A('s_mov_b32', s(sIt), '0')
    def window(last):
        carry = []
        for c in range(6):
            carry = kstep(2 * c, True, None, carry)
            assert not carry
            if last and c >= 3:
                vm = {3: 4, 4: 0, 5: None}[c]
                if c == 5:
                    kstep(2 * c + 1, False, None, [])
                else:
                    kstep(2 * c + 1, True, vm, [])
                    if c == 4:
                        A('s_cmp_eq_u32', s(sPre), '0')
                        A('s_cbranch_scc1', 'LF_Q_nopre')
                        for d in kv_parts(A, opt, 0): d()
                        A.label('LF_Q_nopre')
                continue
            vm = 4 if c % 2 == 0 else 5
            newp = w_parts(c % 3)
            if c % 2 == 0 and not (last and c == 2):
                newp = newp + x_part(((c >> 1) + 2) % 3)
            carry = kstep(2 * c + 1, True, vm, newp)
        return carry
    A.label('LF_Qloop')
    carry = window(False)
    for d in carry: d()
    assert lg.p == saved, (lg.p, saved)
    A('s_add_u32', s(sIt), s(sIt), '1')
    A('s_cmp_lt_u32', s(sIt), '2')
    A('s_cbranch_scc1', 'LF_Qloop')
    window(True)
    assert not lg.p
    for r in range(64):
        A('v_mul_f32', v(vAcc + r), s(sC), v(vAcc + r))
    for t in range(4):
        for hf in range(2):
            for i in range(4):
                a = vAcc + t * 16 + 8 * hf + 2 * i
                A('v_cvt_pk_bf16_f32', v(vQ0 + 4 * (2 * t + hf) + i), v(a), v(a + 1))
    ret(A)


def phase_s(A, opt):
    L = v(vLane)
    vKa, vVa, vM, vL = 4, 12, 16, 17
    vt = list(range(18, 26))
    t0, t1, t2, t3, t4, t5 = [v(x) for x in vt[:6]]
    vO, vS, vP, vF = vW, vW + 64, vW + 96, vW + 112
    A.label('LF_S')
    A('s_barrier')
    def dma_parts(slot):
        return kv_parts(A, opt, slot)
    A('s_cmp_eq_u32', s(sPre), '3')
    A('s_cbranch_scc1', 'LF_S_pre3')
    for sl in range(1, 3):
        for d in dma_parts(sl): d()
    A.label('LF_S_pre3')
    if opt.get('wotouch', True):
        A('s_lshl_b32', s(sTmp), s(sG), '1')
        A('s_add_u32', s(sTmp), s(sTmp), s(sR))
        A('s_mul_i32', s(sTmp), s(sTmp), str(512 * 1152))
        A('s_lshl_b32', s(sTmp2), s(sB), '3')
        A('s_add_u32', s(sTmp2), s(sTmp2), s(sWave))
        A('s_mul_i32', s(sTmp2), s(sTmp2), '2304')
        A('s_add_u32', s(sTmp), s(sTmp), s(sTmp2))
        A('v_min_u32', t0, '17', L)
        A('v_lshlrev_b32', t0, '7', t0)
        A('buffer_load_dword', v(3), t0, s(sWo, 4), s(sTmp), mods='offen ' + opt.get('wotflags', ''))
    A('s_lshl_b32', s(sTmp), s(sTeam), '16')
    A('v_and_b32', t0, '31', L)
    A('v_lshrrev_b32', t1, '5', L)
    A('v_and_b32', t2, '15', L)
    A('v_xor_b32', t2, t2, t1)
    A('v_lshlrev_b32', t0, '8', t0)
    A('v_add_u32', t0, s(sTmp), t0)
    for sidx in range(8):
        A('v_xor_b32', t3, str(2 * sidx), t2)
        A('v_lshl_add_u32', v(vKa + sidx), t3, '4', t0)
    A('v_bfe_u32', t0, L, '2', '2')
    A('v_and_b32', t2, '3', L)
    A('v_bfe_u32', t3, L, '4', '1')
    A('v_lshl_add_u32', t4, t1, '2', t0)
    A('v_lshlrev_b32', t4, '8', t4)
    A('v_lshl_add_u32', t4, t3, '5', t4)
    A('v_lshl_add_u32', t4, t2, '3', t4)
    A('v_add_u32', t4, s(sTmp), t4)
    for t in range(4):
        A('v_xor_b32', t5, str(t), t0)
        A('v_lshl_add_u32', v(vVa + t), t5, '6', t4)
    for r in range(64):
        A('v_mov_b32', v(vO + r), '0')
    vC = vP
    for r in range(16):
        A('v_mov_b32', v(vC + r), '0')
    A('v_mov_b32', v(vL), '0')
    A('v_mov_b32', v(vM), '0')
    sLo = 67
    A('s_mov_b32', s(sThr), '0xff800000')
    A('s_mov_b32', s(sLo), '0xff800000')
    A('s_mov_b32', s(sIt), '0')

    lg = Cnt(A)
    KBUF = [0, 32768]; VBUF = [16384, 49152]
    def kread(par, k):
        u, sidx = k >> 3, k & 7
        A('ds_read_b128', v(vF + 4 * (k % 8), 4), v(vKa + sidx), mods=f'offset:{KBUF[par] + u * 8192}')
        lg.issue(('K', k))
    def vslot(k):
        return (8 + k) % 12
    def vread(par, k):
        e, t = k >> 2, k & 3
        for h2 in range(2):
            A('ds_read_b64_tr_b16', v(vF + 4 * vslot(k) + 2 * h2, 2), v(vVa + t), mods=f'offset:{VBUF[par] + (16 * e + 8 * h2) * 256}')
            lg.issue(('V', k))

    A.waitcnt(vm=9 if opt.get('wotouch', True) else 8)
    A('s_barrier')
    A('s_cmp_eq_u32', s(sTeam), '0')
    A('s_cbranch_scc1', 'LF_S_nst')
    A('s_barrier')
    A.label('LF_S_nst')
    for k in range(4):
        kread(0, k)
    saved = list(lg.p)
    rare = []

    PVS = opt.get('pvs', 8)
    def tile_loop(team):
        A.label(f'LF_Sloop{team}')
        for par in range(2):
            kslot, vsl = 2 * par, 2 * par + 1
            mx = v(vt[0]); mx2 = v(vt[1])
            def max_items(u, first):
                it = []
                base = vS + 16 * u
                if first:
                    it.append(lambda: A('v_max3_f32', mx, v(base), v(base + 1), v(base + 2)))
                    rest = list(range(3, 16))
                else:
                    rest = list(range(0, 16))
                while len(rest) >= 2:
                    a, b = rest[0], rest[1]; rest = rest[2:]
                    it.append(lambda a=a, b=b: A('v_max3_f32', mx, mx, v(base + a), v(base + b)))
                if rest:
                    a = rest[0]
                    it.append(lambda a=a: A('v_max_f32', mx, mx, v(base + a)))
                return it
            m0items = max_items(0, True)
            dq = dma_parts(2 * (1 - par) + 1)
            kread(par, 4); kread(par, 5)
            for k in range(16):
                u, sidx = k >> 3, k & 7
                if k % 2 == 0:
                    lg.wait(('K', min(k + 1, 15)))
                if k == 12:
                    lg.wait(('K', 15))
                    A.waitcnt(vm=8)
                    A('s_barrier')
                    assert not dq
                    dq = dma_parts(kslot)
                acc = v(vS + 16 * u, 16)
                A('v_mfma_f32_32x32x16_bf16', acc, v(vF + 4 * (k % 8), 4), v(vQ0 + 4 * sidx, 4), v(vC, 16) if sidx == 0 else acc)
                if k + 6 < 16:
                    kread(par, k + 6)
                if k >= 12:
                    vread(par, k - 12)
                if k in (1, 3, 5, 7, 14):
                    dq.pop(0)()
                if k >= 11 and m0items:
                    m0items.pop(0)()
                    if m0items: m0items.pop(0)()
            for it in m0items:
                it()
            vread(par, 4); vread(par, 5); vread(par, 6)
            for it in max_items(1, False):
                it()
            A('v_mov_b32', mx2, mx)
            A('v_permlane32_swap_b32', mx, mx2)
            A('v_max_f32', mx, mx, mx2)
            A('v_cmp_lt_f32', 'vcc', s(sThr), mx)
            lr, lb = f'LF_rare{team}{par}', f'LF_back{team}{par}'
            A('s_cbranch_vccnz', lr)
            A.label(lb)
            rare.append((lr, lb))
            def p_items(e):
                it = []
                base = vS + 8 * e
                for r in range(8):
                    it.append(lambda r=r: A('v_exp_f32', v(base + r), v(base + r)))
                for r in range(8):
                    acc = vL if r % 2 == 0 else vM
                    it.append(lambda r=r, acc=acc: A('v_add_f32', v(acc), v(acc), v(base + r)))
                for i in range(4):
                    it.append(lambda i=i: A('v_cvt_pk_bf16_f32', v(base + i), v(base + 2 * i), v(base + 2 * i + 1)))
                return it
            for it in p_items(0):
                it()
            nxt = 7
            for k in range(16):
                e, t = k >> 2, k & 3
                if k == PVS:
                    lg.wait(('V', 15))
                    A.waitcnt(vm=8)
                    A('s_barrier')
                elif k % 2 == 0:
                    lg.wait(('V', k + 1))
                acc = v(vO + 16 * t, 16)
                A('v_mfma_f32_32x32x16_bf16', acc, v(vF + 4 * vslot(k), 4), v(vS + 8 * e, 4), acc)
                n_rd = 2 if k < 4 else 1
                for _ in range(n_rd):
                    if nxt < 16 and (nxt < 12 or nxt - 12 <= k):
                        while len(lg.p) > 13:
                            lg.wait(lg.p[1])
                        vread(par, nxt); nxt += 1
                if k in (1, 4, 6):
                    dq.pop(0)()
                if k >= 12:
                    kread(1 - par, k - 12)
                if e < 3:
                    items = p_items(e + 1)
                    for it in items[5 * t:5 * t + 5]: it()
            assert nxt == 16
            assert not dq
            assert lg.p == saved, (lg.p, saved)
        A('s_add_u32', s(sIt), s(sIt), '1')
        A('s_cmp_lt_u32', s(sIt), '4')
        A('s_cbranch_scc1', f'LF_Sloop{team}')
    tile_loop(0)
    A('s_cmp_lg_u32', s(sTeam), '0')
    A('s_cbranch_scc1', 'LF_S_nst2')
    A('s_barrier')
    A.label('LF_S_nst2')
    l2 = v(vt[0]); inv = v(vt[1])
    A('v_add_f32', v(vL), v(vL), v(vM))
    A('v_mov_b32', l2, v(vL))
    A('v_permlane32_swap_b32', v(vL), l2)
    A('v_add_f32', l2, l2, v(vL))
    A('v_rcp_f32', inv, l2)
    for t in range(4):
        for r in range(16):
            A('v_mul_f32', v(vO + 16 * t + r), v(vO + 16 * t + r), inv)
        for a in range(2):
            for i, r0 in enumerate((4 * a, 4 * a + 2, 8 + 4 * a, 8 + 4 * a + 2)):
                A('v_cvt_pk_bf16_f32', v(vQ0 + 8 * t + 4 * a + i), v(vO + 16 * t + r0), v(vO + 16 * t + r0 + 1))
    A.waitcnt(lgkm=0)
    A('s_cmp_lg_u32', s(sNext), '0')
    A('s_cbranch_scc1', 'LF_S_nowait')
    A.waitcnt(vm=0)
    A.label('LF_S_nowait')
    ret(A)
    for lr, lb in rare:
        mx = v(vt[0]); delta = v(vt[2]); alpha = v(vt[3])
        A.label(lr)
        A('v_max_f32', delta, s(sLo), mx)
        A('v_max_f32', alpha, '0', delta)
        A('v_sub_f32', alpha, '0', alpha)
        A('v_exp_f32', alpha, alpha)
        for r in range(32):
            A('v_sub_f32', v(vS + r), v(vS + r), delta)
        for r in range(16):
            A('v_sub_f32', v(vC + r), v(vC + r), delta)
        A('v_mul_f32', v(vL), v(vL), alpha)
        A('v_mul_f32', v(vM), v(vM), alpha)
        for r in range(64):
            A('v_mul_f32', v(vO + r), v(vO + r), alpha)
        A('s_mov_b32', s(sThr), f32(8.0))
        A('s_mov_b32', s(sLo), '0')
        A('s_branch', lb)


def phase_o(A, opt):
    L = v(vLane)
    vOd, vOe, vOa, vOx, vOb, vOw = 4, 8, 9, 13, 14, 15
    t0, t1, t2, t3, t4, t5 = [v(x) for x in range(20, 26)]
    vAcc, vFA, vFB = vW, vW + 80, vW + 120
    OT = 98304
    RING = 10240
    sM0R = sM0O
    A.label('LF_O')
    A('v_lshrrev_b32', t0, '3', L)
    A('v_and_b32', t1, '7', L)
    A('v_bfe_u32', t2, L, '4', '2')
    A('v_lshlrev_b32', t2, '1', t2)
    A('v_xor_b32', t1, t1, t2)
    A('v_mul_u32_u24', t0, '1152', t0)
    A('v_lshl_add_u32', v(vOd), t1, '4', t0)
    for jj in range(1, 4):
        A('v_add_u32', v(vOd + jj), str(jj * (8 * 1152 - 1024)), v(vOd))
    A('v_lshrrev_b32', t0, '1', L)
    A('v_and_b32', t1, '1', L)
    A('v_mul_u32_u24', t0, '1152', t0)
    A('v_lshl_add_u32', t0, t1, '4', t0)
    A('s_mul_i32', s(sTmp), s(sWave), '96')
    A('s_sub_u32', s(sTmp), '1024', s(sTmp))
    A('v_add_u32', v(vOe), s(sTmp), t0)
    A('s_lshl_b32', s(sWoBase), s(sG), '1')
    A('s_add_u32', s(sWoBase), s(sWoBase), s(sR))
    A('s_mul_i32', s(sWoBase), s(sWoBase), str(512 * 1152))
    A('s_lshl_b32', s(sTmp), s(sWave), '7')
    A('s_add_u32', s(sWoff), s(sWoBase), s(sTmp))
    A('s_mov_b32', s(sCk), '0')
    A('s_mul_i32', s(sM0R), s(sWave), str(RING))
    def wo_parts(st, team):
        parts = []
        for jj in range(4):
            def f(jj=jj):
                if jj == 0:
                    A('s_add_u32', 'm0', s(sM0R), str(st * 5120))
                A('buffer_load_dwordx4', v(vOd + jj), s(sWo, 4), s(sWoff), mods=f'offen offset:{jj*1024} lds')
                if jj == 3:
                    if team == 0:
                        A('s_add_u32', 'm0', s(sM0R), str(st * 5120 + 4096))
                        A('buffer_load_dwordx4', v(vOe), s(sWo, 4), s(sWoff), mods='offen lds')
                    A('s_add_u32', s(sCk), s(sCk), '1')
                    A('s_add_u32', s(sWoff), s(sWoff), str(32 * 1152))
                    A('s_cmp_eq_u32', s(sCk), '16')
                    A('s_cselect_b32', s(sWoff), OOB, s(sWoff))
            parts.append(f)
        return parts
    A('s_barrier')
    A('s_cmp_lg_u32', s(sTeam), '0')
    A('s_cbranch_scc1', 'LF_O_p1')
    for d in wo_parts(0, 0) + wo_parts(1, 0): d()
    A('s_branch', 'LF_O_p2')
    A.label('LF_O_p1')
    for d in wo_parts(0, 1) + wo_parts(1, 1): d()
    A.label('LF_O_p2')
    A('v_bfe_u32', t0, L, '4', '1')
    A('v_and_b32', t2, '15', L)
    A('v_lshrrev_b32', t1, '5', L)
    A('v_lshlrev_b32', t2, '4', t2)
    A('v_lshl_add_u32', t2, t0, '10', t2)
    A('v_lshl_add_u32', t2, t1, '8', t2)
    A('s_lshr_b32', s(sTmp), s(sWave), '1')
    A('s_lshl_b32', s(sTmp), s(sTmp), '14')
    A('s_and_b32', s(sTmp2), s(sWave), '1')
    A('s_lshl_b32', s(sTmp2), s(sTmp2), '11')
    A('s_add_u32', s(sTmp), s(sTmp), s(sTmp2))
    A('s_add_u32', s(sTmp), s(sTmp), str(OT))
    A('v_add_u32', v(vOw), s(sTmp), t2)
    for t in range(4):
        for a in range(2):
            A('ds_write_b128', v(vOw), v(vQ0 + 8 * t + 4 * a, 4), mods=f'offset:{t * 4096 + a * 512}')
    A('v_lshlrev_b32', t0, '4', L)
    A('v_add_u32', v(vOb), str(OT), t0)
    A('v_lshrrev_b32', t0, '2', L)
    A('v_bfe_u32', t1, L, '3', '2')
    A('v_and_b32', t2, '3', L)
    A('v_lshlrev_b32', t3, '7', t0)
    A('v_lshl_add_u32', t3, t2, '3', t3)
    A('v_add_u32', t3, s(sM0R), t3)
    for tn in range(4):
        A('v_xor_b32', t4, str(tn), t1)
        A('v_lshl_add_u32', v(vOa + tn), t4, '5', t3)
    A('v_lshlrev_b32', t3, '5', t0)
    A('v_lshl_add_u32', t3, t2, '3', t3)
    A('v_add_u32', v(vOx), s(sM0R), t3)
    A('s_cmp_eq_u32', s(sFlagZ), '0')
    A('s_cbranch_scc1', 'LF_O_nz')
    for r in range(80):
        A('v_mov_b32', v(vAcc + r), '0')
    A.label('LF_O_nz')
    A.waitcnt(lgkm=0)
    A('s_barrier')

    def body(team):
        nt = 5 if team == 0 else 4
        G = nt
        lg = Cnt(A)
        def aread(st, tn):
            for e in range(2):
                if tn < 4:
                    A('ds_read_b64_tr_b16', v(vFA + 20 * st + 4 * tn + 2 * e, 2), v(vOa + tn), mods=f'offset:{st * 5120 + e * 2048}')
                else:
                    A('ds_read_b64_tr_b16', v(vFA + 20 * st + 16 + 2 * e, 2), v(vOx), mods=f'offset:{st * 5120 + 4096 + e * 512}')
                lg.issue(('A', st, tn))
        def bread(st, qt, off):
            A('ds_read_b128', v(vFB + 16 * st + 4 * qt, 4), v(vOb), mods=f'offset:{off + qt * 1024}')
            lg.issue(('B', st, qt))
        A.waitcnt(vm=G)
        for tn in range(nt): aread(0, tn)
        for qt in range(4): bread(0, qt, 0)
        A.waitcnt(lgkm=0); lg.p = []
        for d in wo_parts(0, team): d()
        A('s_mov_b32', s(sIt), '0')
        A.label(f'LF_Oloop{team}')
        for st in range(2):
            A.waitcnt(vm=G)
            rd = [(lambda tn=tn: aread(1 - st, tn)) for tn in range(nt)] + [(lambda qt=qt: bread(1 - st, qt, 4096 * (st + 1))) for qt in range(4)]
            dma = wo_parts(1 - st, team)
            n = 0
            for tn in range(nt):
                for qt in range(4):
                    acc = v(vAcc + (tn * 4 + qt) * 4, 4)
                    A('v_mfma_f32_16x16x32_bf16', acc, v(vFA + 20 * st + 4 * tn, 4), v(vFB + 16 * st + 4 * qt, 4), acc)
                    n += 1
                    if rd:
                        rd.pop(0)()
                    elif dma and n >= nt + 6 and (n - nt) % 2 == 0:
                        if len(dma) == 4:
                            lg.wait(('A', 1 - st, nt - 1))
                        dma.pop(0)()
            for d in dma: d()
            A.waitcnt(lgkm=0); lg.p = []
        A('v_add_u32', v(vOb), '8192', v(vOb))
        A('s_add_u32', s(sIt), s(sIt), '1')
        A('s_cmp_lt_u32', s(sIt), '8')
        A('s_cbranch_scc1', f'LF_Oloop{team}')
        A.waitcnt(vm=0)
        A('s_cmp_eq_u32', s(sFlagS), '0')
        A('s_cbranch_scc1', 'LF_O_ns')
        A('v_lshlrev_b32', t0, '4', L)
        A('s_lshl_b32', s(sTmp), s(sWave), '13')
        A('s_add_u32', s(sTmp), s(sTmp), s(sPoff))
        for tn in range(nt):
            for qp in range(2):
                d = vFA + 4 * (2 * tn + qp)
                for k in range(2):
                    a = vAcc + (tn * 4 + 2 * qp + k) * 4
                    A('v_cvt_pk_bf16_f32', v(d + 2 * k), v(a), v(a + 1))
                    A('v_cvt_pk_bf16_f32', v(d + 2 * k + 1), v(a + 2), v(a + 3))
                if tn == 2 and qp == 0:
                    A('s_add_u32', s(sTmp), s(sTmp), '4096')
                if tn == 4 and qp == 0:
                    A('s_lshl_b32', s(sTmp), s(sWave), '11')
                    A('s_add_u32', s(sTmp), s(sTmp), s(sPoff))
                    A('s_add_u32', s(sTmp), s(sTmp), '65536')
                A('buffer_store_dwordx4', v(d, 4), t0, s(sWS, 4), s(sTmp), mods=f'offen offset:{((tn % 2) * 2 + qp) * 1024} {opt.get("pflags", "")}')
    A('s_cmp_lg_u32', s(sTeam), '0')
    A('s_cbranch_scc1', 'LF_O_b1')
    body(0)
    A('s_branch', 'LF_O_ns')
    A.label('LF_O_b1')
    body(1)
    A.label('LF_O_ns')
    ret(A)


def reduce_kernel(A, opt):
    kn = 'reduce_kernel'
    A.raw('.globl %s\n.p2align 8\n.type %s,@function' % (kn, kn))
    A.label(kn)
    A('s_cmp_ge_u32', 's2', str(64 * 18))
    A('s_cbranch_scc1', 'LR_done')
    A('s_load_dwordx2', s(16, 2), s(0, 2), '80')
    A('s_load_dwordx2', s(18, 2), s(0, 2), '96')
    A('s_mul_i32', s(20), 's2', '3641')
    A('s_lshr_b32', s(20), s(20), '16')
    A('s_mul_i32', s(21), s(20), '18')
    A('s_sub_u32', s(21), 's2', s(21))
    A('v_lshrrev_b32', v(1), '6', v(0))
    A('v_readfirstlane_b32', s(22), v(1))
    A('s_lshl_b32', s(23), s(21), '2')
    A('s_add_u32', s(23), s(23), s(22))
    A('s_lshr_b32', s(24), s(23), '1')
    A('s_and_b32', s(25), s(23), '1')
    A('v_and_b32', v(1), '63', v(0))
    A('v_lshlrev_b32', v(2), '4', v(1))
    A.waitcnt(lgkm=0)
    srd(A, 4, 16, OUT_BYTES)
    srd(A, 8, 18, WS_BYTES)
    A('s_mul_i32', s(26), s(20), str(8 * PART))
    A('s_lshl_b32', s(27), s(23), '10')
    A('s_add_u32', s(26), s(26), s(27))
    A('s_and_b32', s(28), s(20), '1')
    for g in range(4):
        A('s_add_u32', s(30), s(26), str(g * 2 * PART))
        A('buffer_load_dwordx4', v(8 + 4 * g, 4), v(2), s(8, 4), s(30), mods='offen ' + opt.get('rflags', ''))
    A('s_and_b32', s(31), s(20), '31')
    A('s_lshr_b32', s(32), s(20), '5')
    A('s_lshl_b32', s(31), s(31), '6')
    A('s_lshl_b32', s(33), s(25), '5')
    A('s_add_u32', s(31), s(31), s(33))
    A('s_mul_i32', s(31), s(31), '2304')
    A('s_mul_i32', s(32), s(32), '1152')
    A('s_add_u32', s(31), s(31), s(32))
    A('s_lshl_b32', s(33), s(24), '5')
    A('s_add_u32', s(31), s(31), s(33))
    A('v_and_b32', v(3), '15', v(1))
    A('v_mul_u32_u24', v(3), '2304', v(3))
    A('v_lshrrev_b32', v(4), '4', v(1))
    A('v_lshl_add_u32', v(3), v(4), '3', v(3))
    for k in range(4):
        A.waitcnt(vm=3 - k)
        for d in range(4):
            src = v(8 + 4 * k + d)
            if k == 0:
                A('v_lshlrev_b32', v(32 + 2 * d), '16', src)
                A('v_and_b32', v(33 + 2 * d), '0xffff0000', src)
            else:
                A('v_lshlrev_b32', v(40), '16', src)
                A('v_and_b32', v(41), '0xffff0000', src)
                A('v_add_f32', v(32 + 2 * d), v(32 + 2 * d), v(40))
                A('v_add_f32', v(33 + 2 * d), v(33 + 2 * d), v(41))
    for d in range(4):
        A('v_cvt_pk_bf16_f32', v(44 + d), v(32 + 2 * d), v(33 + 2 * d))
    A('buffer_store_dwordx2', v(44, 2), v(3), s(4, 4), s(31), mods='offen ' + opt.get('oflags', ''))
    A('s_add_u32', s(31), s(31), str(16 * 2304))
    A('buffer_store_dwordx2', v(46, 2), v(3), s(4, 4), s(31), mods='offen ' + opt.get('oflags', ''))
    A.label('LR_done')
    A('s_endpgm')
    return kn


def kd(name, vgpr, sgpr):
    return f'''.amdhsa_kernel {name}
  .amdhsa_next_free_vgpr {vgpr}
  .amdhsa_next_free_sgpr {sgpr}
  .amdhsa_accum_offset {vgpr}
  .amdhsa_group_segment_fixed_size 0
  .amdhsa_kernarg_size 104
  .amdhsa_user_sgpr_count 2
  .amdhsa_user_sgpr_kernarg_segment_ptr 1
  .amdhsa_system_sgpr_workgroup_id_x 1
.end_amdhsa_kernel
'''

def generate(opt):
    A = Asm()
    ka = fused_kernel(A, opt)
    kb = reduce_kernel(A, opt)
    errs = A.check_branches()
    for e in errs:
        print('HAZARD:', e, file=sys.stderr)
    assert not errs
    hdr = [l for l in HDR if l.startswith(';') and '@launch' not in l]
    out = '\n'.join(hdr) + '\n'
    out += f'; @launch kernel={ka} grid=(256,1,1) block=(512,1,1) lds=163840\n'
    out += f'; @launch kernel={kb} grid=(1152,1,1) block=(256,1,1) lds=0\n'
    out += '.amdgcn_target "amdgcn-amd-amdhsa--gfx950"\n.text\n'
    out += A.text().replace('CODEBYTES', 'LCODE_END-fused_kernel')
    out += 'LCODE_END:\n'
    out += '.section .rodata,"a"\n.p2align 6\n'
    out += kd(ka, 256, 102)
    out += '.p2align 6\n'
    out += kd(kb, 48, 40)
    return out

if __name__ == '__main__':
    opt = {}
    for a in sys.argv[2:]:
        k, val = a.split('=')
        opt[k] = eval(val)
    txt = generate(opt)
    open(sys.argv[1], 'w').write(txt)
    print('wrote', sys.argv[1], len(txt))
```

```python
import sys, math, struct
sys.path.insert(0, 'gen')
from asmlib import *

NAME = 'concat_heads__gqa_block_cached__gqa_block_cached__near_ridge'
HDR = open('cdna_kernels/' + NAME + '.s.ref').read().split('\n')

X_BYTES = 32 * 64 * 576 * 2
KV_BYTES = 32 * 16 * 512 * 128 * 2
W_BYTES = 576 * 4096 * 2
OUT_BYTES = 32 * 64 * 1152 * 2
PART = 64 * 576 * 2
WS_BYTES = 64 * 8 * PART
OOB = '0x7f000000'

def f32(x):
    return hex(int.from_bytes(struct.pack('<f', x), 'little'))

class Cnt:
    def __init__(self, A, maxn=15):
        self.A = A; self.p = []; self.maxn = maxn
    def issue(self, tag):
        self.p.append(tag)
        assert len(self.p) <= self.maxn, len(self.p)
    def wait(self, tag):
        idx = None
        for k, t in enumerate(self.p):
            if t == tag:
                idx = k
        if idx is None:
            return
        self.A.waitcnt(lgkm=len(self.p) - idx - 1)
        self.p = self.p[idx + 1:]

def srd(A, d, plo, nbytes):
    A('s_mov_b32', s(d), s(plo))
    A('s_and_b32', s(d + 1), s(plo + 1), '0xffff')
    A('s_mov_b32', s(d + 2), hex(nbytes))
    A('s_mov_b32', s(d + 3), '0x00020000')

sX, sK, sV, sWq, sWo, sWS = 4, 8, 12, 16, 20, 24
sWave, sTeam, sTmp, sTmp2, sType, sC, sThr = 28, 29, 30, 31, 32, 33, 34
sR, sIt, sT, sKVoff, sKVbase, sM0KV = 35, 36, 37, 38, 39, 40
sWbase, sXbase, sWoff, sXoff, sCk, sXk = 41, 42, 43, 44, 45, 46
sG, sB, sP, sW3 = 47, 48, 49, 50
sM0W, sM0X, sWoBase, sPoff, sFlagZ, sFlagS = 51, 52, 53, 54, 55, 56
sRet = 58
sM0O = 60
sLd = 70
sStamp = 72
vTid, vLane = 0, 1
vA0 = 4
vQ0, vQ1 = 32, 64
vKd, vVd = 27, 31
sKoff, sVoff, sKn, sVn, sPre, sNext, sJump = 38, 57, 37, 63, 64, 65, 66
vW = 96


def fused_kernel(A, opt):
    kn = 'fused_kernel'
    A.raw('.globl %s\n.p2align 8\n.type %s,@function' % (kn, kn))
    A.label(kn)
    L = v(vLane)
    nst = [0]
    def stamp():
        if opt.get('stamp'):
            A('s_memrealtime', s(sStamp + 2 * nst[0], 2))
            A('s_memtime', s(70, 2))
            A.waitcnt(lgkm=0)
            A('s_mov_b32', s(sStamp + 2 * nst[0] + 1), s(70))
            nst[0] += 1

    A('s_cmp_ge_u32', 's2', '256')
    A('s_cbranch_scc1', 'LF_done')
    if opt.get('codewarm', False):
        A('s_getpc_b64', s(96, 2))
        A('s_and_b32', s(96), s(96), '0xffffff00')
        A('s_and_b32', s(97), s(97), '0xffff')
        A('s_mov_b32', s(98), 'CODEBYTES')
        A('s_mov_b32', s(99), '0x00020000')
        A('v_lshlrev_b32', v(2), '7', v(vTid))
        A('buffer_load_dword', v(3), v(2), s(96, 4), '0', mods='offen ' + opt.get('cflags', ''))
    A('s_load_dwordx8', s(72, 8), s(0, 2), '0')
    A('s_load_dwordx2', s(80, 2), s(0, 2), '32')
    A('s_load_dwordx8', s(84, 8), s(0, 2), '40')
    A('s_load_dwordx2', s(92, 2), s(0, 2), '72')
    A('s_load_dwordx2', s(94, 2), s(0, 2), '96')
    A('s_and_b32', s(sTmp), 's2', '7')
    A('s_lshr_b32', s(sP), s(sTmp), '2')
    A('s_and_b32', s(sG), s(sTmp), '3')
    A('s_lshr_b32', s(sB), 's2', '3')
    A('s_add_u32', s(sType), s(sB), s(sG))
    A('s_and_b32', s(sType), s(sType), '1')
    if opt.get('typemode') == 'p': A('s_mov_b32', s(sType), s(sP))
    if opt.get('typemode') == 'g': A('s_and_b32', s(sType), s(sG), '1')
    A('v_and_b32', L, '63', v(vTid))
    A('v_lshrrev_b32', v(2), '6', v(vTid))
    A('v_readfirstlane_b32', s(sWave), v(2))
    A('s_lshr_b32', s(sTeam), s(sWave), '2')
    A('s_and_b32', s(sW3), s(sWave), '3')
    A('s_mov_b32', s(sC), f32((128 ** -0.5) * math.log2(math.e)))
    A('s_mov_b32', s(sThr), f32(8.0 / ((128 ** -0.5) * math.log2(math.e))))
    A.waitcnt(lgkm=0)
    A('s_cmp_eq_u32', s(sP), '0')
    for k in range(4):
        A('s_cselect_b64', s(72 + 2 * k, 2), s(72 + 2 * k, 2), s(84 + 2 * k, 2))
    A('s_cselect_b64', s(80, 2), s(80, 2), s(92, 2))
    srd(A, sX, 72, X_BYTES)
    srd(A, sK, 74, KV_BYTES)
    srd(A, sV, 76, KV_BYTES)
    srd(A, sWq, 78, W_BYTES)
    srd(A, sWo, 80, W_BYTES)
    srd(A, sWS, 94, (0x10000000 if opt.get('stamp') else WS_BYTES))
    A('s_lshl_b32', s(sKVbase), s(sB), '4')
    A('s_lshl_b32', s(sTmp), s(sG), '2')
    A('s_add_u32', s(sKVbase), s(sKVbase), s(sTmp))
    A('s_add_u32', s(sKVbase), s(sKVbase), s(sTeam))
    A('s_lshl_b32', s(sKVbase), s(sKVbase), '17')
    A('s_lshl_b32', s(sTmp), s(sW3), '12')
    A('s_add_u32', s(sKVbase), s(sKVbase), s(sTmp))
    A('s_lshl_b32', s(sM0KV), s(sTeam), '16')
    A('s_add_u32', s(sM0KV), s(sM0KV), s(sTmp))
    A('s_lshl_b32', s(sM0W), s(sWave), '12')
    A('s_lshl_b32', s(sM0X), s(sWave), '10')
    A('s_lshl_b32', s(sXbase), s(sB), '6')
    A('s_lshl_b32', s(sTmp), s(sWave), '3')
    A('s_add_u32', s(sXbase), s(sXbase), s(sTmp))
    A('s_mulk_i32', s(sXbase), '1152')
    A('s_lshl_b32', s(sPoff), s(sP), '5')
    A('s_add_u32', s(sPoff), s(sPoff), s(sB))
    A('s_lshl_b32', s(sPoff), s(sPoff), '2')
    A('s_add_u32', s(sPoff), s(sPoff), s(sG))
    A('s_mul_i32', s(sPoff), s(sPoff), str(2 * PART))
    A('v_lshrrev_b32', v(4), '4', L)
    A('v_and_b32', v(5), '15', L)
    for jj in range(4):
        A('v_add_u32', v(6), str(4 * jj), v(4))
        A('v_xor_b32', v(6), v(6), v(5))
        A('v_lshlrev_b32', v(6), '4', v(6))
        A('v_lshl_add_u32', v(vKd + jj), v(4), '8', v(6))
    A('v_lshlrev_b32', v(6), '2', v(4))
    A('v_xor_b32', v(6), v(6), v(5))
    A('v_lshlrev_b32', v(6), '4', v(6))
    A('v_lshl_add_u32', v(vVd), v(4), '8', v(6))
    if opt.get('q0touch', False):
        A('s_lshr_b32', s(sTmp2), s(sB), '1')
        A('s_lshl_b32', s(sTmp2), s(sTmp2), '3')
        A('s_add_u32', s(sTmp2), s(sTmp2), s(sWave))
        A('s_mul_i32', s(sTmp2), s(sTmp2), '36')
        A('v_min_u32', v(4), '35', L)
        A('v_add_u32', v(4), s(sTmp2), v(4))
        A('v_and_b32', v(5), '7', v(4))
        A('v_lshrrev_b32', v(4), '3', v(4))
        A('v_lshlrev_b32', v(4), '13', v(4))
        A('v_lshl_add_u32', v(4), v(5), '7', v(4))
        A('s_lshl_b32', s(sTmp), s(sG), '1')
        A('s_add_u32', s(sTmp), s(sTmp), s(sType))
        A('s_lshl_b32', s(sTmp), s(sTmp), '10')
        A('buffer_load_dword', v(3), v(4), s(sWq, 4), s(sTmp), mods='offen nt')
        A('v_lshlrev_b32', v(4), '7', L)
        A('buffer_load_dword', v(3), v(4), s(sX, 4), s(sXbase), mods='offen nt')
        A('buffer_load_dword', v(3), v(4), s(sX, 4), s(sXbase), mods='offen offset:1024 nt')
    if opt.get('tlbwarm', False):
        A('s_cmp_lg_u32', s(sWave), '0')
        A('s_cbranch_scc1', 'LF_ntw')
        A('v_lshlrev_b32', v(4), '13', L)
        A('buffer_load_dword', v(3), v(4), s(sK, 4), s(sKVbase), mods='offen nt')
        A('buffer_load_dword', v(3), v(4), s(sV, 4), s(sKVbase), mods='offen nt')
        A.label('LF_ntw')
    stamp()

    def kvinit(r):
        A('s_add_u32', s(sKoff), s(sKVbase), str(r << 18))
        if opt.get('kv_oob'): A('s_mov_b32', s(sKoff), '0x70000000')
        A('s_mov_b32', s(sVoff), s(sKoff))
        A('s_mov_b32', s(sKn), '0')
        A('s_mov_b32', s(sVn), '0')
    def call(lbl):
        A('s_call_b64', s(sRet, 2), lbl)
        A('s_nop', '7'); A('s_nop', '7')
    def setr(r):
        A('s_mov_b32', s(sR), str(r))
    def mov32(dst, src):
        for i in range(32):
            A('v_mov_b32', v(dst + i), v(src + i))
    def swap32():
        for i in range(32):
            A('v_swap_b32', v(vQ0 + i), v(vQ1 + i))

    setr(1); kvinit(0)
    A('s_mov_b32', s(sPre), '1'); A('s_mov_b32', s(sNext), '1'); A('s_mov_b32', s(sJump), '0x20000')
    call('LF_Q'); stamp()
    setr(0)
    call('LF_S'); stamp()
    swap32()
    setr(1)
    A('s_mov_b32', s(sPre), '3'); A('s_mov_b32', s(sNext), '0'); A('s_mov_b32', s(sJump), '0x40000000')
    call('LF_S'); stamp()
    setr(0)
    call('LF_O'); stamp()
    A.label('LF_end')
    if opt.get('stamp'):
        A('s_lshl_b32', s(sTmp), 's2', '3')
        A('s_add_u32', s(sTmp), s(sTmp), s(sWave))
        A('s_lshl_b32', s(sTmp), s(sTmp), '6')
        A('s_add_u32', s(sTmp), s(sTmp), hex(200 << 20))
        A('v_mov_b32', v(6), '0')
        A('s_mov_b64', 'exec', '1')
        for i in range(7):
            A('v_mov_b32', v(4), s(sStamp + 2 * i))
            A('v_mov_b32', v(5), s(sStamp + 2 * i + 1))
            A('buffer_store_dwordx2', v(4, 2), v(6), s(sWS, 4), s(sTmp), mods=f'offen offset:{8*i}')
            A.waitcnt(vm=0)
    A.label('LF_done')
    A('s_endpgm')

    phase_q(A, opt)
    phase_s(A, opt)
    phase_o(A, opt)
    return kn


def kv_parts(A, opt, slot):
    kvflags = opt.get('kvflags', 'nt')
    parts = []
    isk = slot % 2 == 0
    so, sn = (sKoff, sKn) if isk else (sVoff, sVn)
    for jj in range(4):
        def f(jj=jj):
            if jj == 0:
                A('s_add_u32', 'm0', s(sM0KV), str(slot * 16384))
            if isk:
                A('buffer_load_dwordx4', v(vKd + jj), s(sK, 4), s(so), mods=f'offen offset:{jj*1024} {kvflags} lds')
            else:
                A('buffer_load_dwordx4', v(vVd), s(sV, 4), s(so), mods=f'offen offset:{jj*1024} {kvflags} lds')
            if jj == 3:
                A('s_add_u32', s(sn), s(sn), '1')
                A('s_add_u32', s(so), s(so), '0x4000')
                A('s_and_b32', s(sTmp2), s(sn), '7')
                A('s_cselect_b32', s(sTmp), '0', s(sJump))
                A('s_add_u32', s(so), s(so), s(sTmp))
        parts.append(f)
    return parts


def ret(A):
    A('s_nop', '7'); A('s_nop', '7')
    A('s_setpc_b64', s(sRet, 2))


def phase_q(A, opt):
    L = v(vLane)
    vWd, vWa, vXd, vXa = 4, 8, 12, 13
    t0, t1, t2, t3, t4, t5 = [v(x) for x in range(21, 27)]
    vAcc, vFA, vFB = vW, vW + 64, vW + 96
    WST = [98304, 16384, 131072]
    XSL = [49152, 57344, 81920]
    A.label('LF_Q')
    for jj in range(4):
        A('v_xor_b32', t0, str(4 * jj), L)
        A('v_lshlrev_b32', t0, '4', t0)
        A('v_add_u32', v(vWd + jj), str(jj * (8192 - 1024)), t0)
    A('s_and_b32', s(sTmp), s(sWave), '1')
    A('s_lshl_b32', s(sTmp), s(sTmp), '2')
    A('v_lshrrev_b32', t0, '4', L)
    A('v_add_u32', t0, s(sTmp), t0)
    A('v_and_b32', t1, '7', L)
    A('v_xor_b32', t0, t0, t1)
    A('v_lshlrev_b32', t0, '4', t0)
    A('v_lshrrev_b32', t1, '3', L)
    A('v_mul_u32_u24', t1, '1152', t1)
    A('v_add_u32', v(vXd), t0, t1)
    A('s_lshl_b32', s(sWbase), s(sG), '1')
    A('s_add_u32', s(sWbase), s(sWbase), s(sR))
    A('s_lshl_b32', s(sWbase), s(sWbase), '10')
    A('s_lshl_b32', s(sTmp), s(sWave), '15')
    A('s_add_u32', s(sWbase), s(sWbase), s(sTmp))
    A('s_mul_i32', s(sTmp), s(sB), '57')
    A('s_lshr_b32', s(sTmp), s(sTmp), '9')
    A('s_mul_i32', s(sTmp), s(sTmp), '9')
    A('s_sub_u32', s(sXk), s(sB), s(sTmp))
    A('s_lshl_b32', s(sCk), s(sXk), '1')
    A('s_mov_b32', s(sFlagS), '0')

    def w_parts(st):
        parts = []
        for jj in range(4):
            def f(jj=jj):
                if jj == 0:
                    A('s_lshl_b32', s(sWoff), s(sCk), '18')
                    A('s_add_u32', s(sWoff), s(sWoff), s(sWbase))
                    A('s_add_u32', s(sCk), s(sCk), '1')
                    A('s_cmp_eq_u32', s(sCk), '18')
                    A('s_cselect_b32', s(sCk), '0', s(sCk))
                    A('s_add_u32', s(sFlagS), s(sFlagS), '1')
                    A('s_cmp_eq_u32', s(sFlagS), '18')
                    A('s_cselect_b32', s(sTmp), '1024', '0')
                    A('s_sub_u32', s(sWbase), s(sWbase), s(sTmp))
                A('s_add_u32', 'm0', s(sM0W), str(WST[st]))
                A('buffer_load_dwordx4', v(vWd + jj), s(sWq, 4), s(sWoff), mods=f'offen offset:{jj*1024} {opt.get("wqflags", "")} lds')
            parts.append(f)
        return parts
    def x_part(sl):
        def f():
            A('s_lshl_b32', s(sXoff), s(sXk), '7')
            A('s_add_u32', s(sXoff), s(sXoff), s(sXbase))
            A('s_add_u32', s(sXk), s(sXk), '1')
            A('s_cmp_eq_u32', s(sXk), '9')
            A('s_cselect_b32', s(sXk), '0', s(sXk))
            A('s_add_u32', 'm0', s(sM0X), str(XSL[sl]))
            A('buffer_load_dwordx4', v(vXd), s(sX, 4), s(sXoff), mods='offen ' + opt.get('xflags', '') + ' lds')
        return [f]
    A('s_barrier')
    for d in x_part(0) + w_parts(0):
        d()
    A('v_bfe_u32', t0, L, '2', '2')
    A('v_lshrrev_b32', t1, '5', L)
    A('v_and_b32', t2, '1', L)
    A('v_bfe_u32', t3, L, '1', '1')
    A('v_lshl_add_u32', t2, t2, '1', t3)
    A('v_bfe_u32', t3, L, '4', '1')
    A('v_lshl_add_u32', t4, t1, '3', t0)
    A('v_lshlrev_b32', t4, '10', t4)
    A('v_lshl_add_u32', t4, t3, '5', t4)
    A('v_lshl_add_u32', t4, t2, '3', t4)
    A('s_lshr_b32', s(sTmp), s(sWave), '1')
    A('s_lshl_b32', s(sTmp), s(sTmp), '8')
    A('v_add_u32', t4, s(sTmp), t4)
    for t in range(4):
        A('v_xor_b32', t5, str(t), t0)
        A('v_lshl_add_u32', v(vWa + t), t5, '6', t4)
    vWa2 = 17
    for t in range(4):
        A('v_add_u32', v(vWa2 + t), '0x18000', v(vWa + t))
    A('v_and_b32', t0, '31', L)
    A('s_and_b32', s(sTmp), s(sWave), '1')
    A('s_lshl_b32', s(sTmp), s(sTmp), '5')
    A('v_add_u32', t0, s(sTmp), t0)
    A('v_bfe_u32', t2, L, '1', '3')
    A('v_xor_b32', t2, t2, t1)
    for s4 in range(4):
        A('v_xor_b32', t3, str(2 * s4), t2)
        A('v_lshlrev_b32', t3, '4', t3)
        A('v_lshl_add_u32', v(vXa + s4), t0, '7', t3)
        A('v_add_u32', v(vXa + s4), '49152', v(vXa + s4))
    for r in range(64):
        A('v_mov_b32', v(vAcc + r), '0')

    lg = Cnt(A)
    def reads(kk, part):
        c, sidx = (kk >> 1) % 3, kk & 1
        X, s4 = (kk >> 2) % 3, kk & 3
        par = kk & 1
        base = WST[c]
        if part == 'B':
            A('ds_read_b128', v(vFB + 4 * par, 4), v(vXa + s4), mods=f'offset:{XSL[X] - 49152}')
            lg.issue(('B', par))
        else:
            t = part
            for e in range(2):
                off = base + (16 * sidx + 4 * e) * 1024
                if base >= 98304:
                    A('ds_read_b64_tr_b16', v(vFA + 16 * par + 4 * t + 2 * e, 2), v(vWa2 + t), mods=f'offset:{off - 98304}')
                else:
                    A('ds_read_b64_tr_b16', v(vFA + 16 * par + 4 * t + 2 * e, 2), v(vWa + t), mods=f'offset:{off}')
                lg.issue(('A', par, t))
    def kstep(kk, nxt, sync, dma):
        par = kk & 1
        if sync is not None:
            A.waitcnt(vm=sync, lgkm=0); lg.p = []
            A('s_barrier')
        dma = list(dma)
        for t in range(4):
            lg.wait(('A', par, t)); lg.wait(('B', par))
            acc = v(vAcc + 16 * t, 16)
            A('v_mfma_f32_32x32x16_bf16', acc, v(vFA + 16 * par + 4 * t, 4), v(vFB + 4 * par, 4), acc)
            if nxt:
                if t == 0: reads(kk + 1, 'B'); reads(kk + 1, 0)
                elif t == 1: reads(kk + 1, 1); reads(kk + 1, 2)
                elif t == 2: reads(kk + 1, 3)
            if dma and t != 0:
                dma.pop(0)()
        return dma

    for d in w_parts(1) + x_part(1):
        d()
    A.waitcnt(vm=5)
    A('s_barrier')
    reads(0, 'B')
    for t in range(4): reads(0, t)
    for d in w_parts(2):
        d()
    saved = list(lg.p)
    A('s_mov_b32', s(sIt), '0')
    def window(last):
        carry = []
        for c in range(6):
            carry = kstep(2 * c, True, None, carry)
            assert not carry
            if last and c >= 3:
                vm = {3: 4, 4: 0, 5: None}[c]
                if c == 5:
                    kstep(2 * c + 1, False, None, [])
                else:
                    kstep(2 * c + 1, True, vm, [])
                    if c == opt.get('wotc', 4):
                        A('s_mul_i32', s(sTmp), s(sG), str(1024 * 1152))
                        A('s_lshl_b32', s(sTmp2), s(sB), '3')
                        A('s_add_u32', s(sTmp2), s(sTmp2), s(sWave))
                        A('s_mul_i32', s(sTmp2), s(sTmp2), '4608')
                        A('s_add_u32', s(sTmp), s(sTmp), s(sTmp2))
                        A('v_min_u32', t0, '35', L)
                        A('v_lshlrev_b32', t0, '7', t0)
                        A('buffer_load_dword', v(3), t0, s(sWo, 4), s(sTmp), mods='offen')
                    if c == 4:
                        A('s_cmp_eq_u32', s(sPre), '0')
                        A('s_cbranch_scc1', 'LF_Q_nopre')
                        for d in kv_parts(A, opt, 0): d()
                        A.label('LF_Q_nopre')
                continue
            vm = 4 if c % 2 == 0 else 5
            newp = w_parts(c % 3)
            if c % 2 == 0 and not (last and c == 2):
                newp = newp + x_part(((c >> 1) + 2) % 3)
            carry = kstep(2 * c + 1, True, vm, newp)
        return carry
    A.label('LF_Qloop')
    carry = window(False)
    for d in carry: d()
    assert lg.p == saved, (lg.p, saved)
    A('s_add_u32', s(sIt), s(sIt), '1')
    A('s_cmp_lg_u32', s(sIt), '3')
    A('s_cbranch_scc1', 'LF_Q_nomid')
    for r in range(64):
        A('v_mul_f32', v(vAcc + r), s(sC), v(vAcc + r))
    for t in range(4):
        for hf in range(2):
            for i in range(4):
                a = vAcc + t * 16 + 8 * hf + 2 * i
                A('v_cvt_pk_bf16_f32', v(vQ1 + 4 * (2 * t + hf) + i), v(a), v(a + 1))
    for r in range(64):
        A('v_mov_b32', v(vAcc + r), '0')
    A.label('LF_Q_nomid')
    A('s_cmp_lt_u32', s(sIt), '5')
    A('s_cbranch_scc1', 'LF_Qloop')
    window(True)
    assert not lg.p
    for r in range(64):
        A('v_mul_f32', v(vAcc + r), s(sC), v(vAcc + r))
    for t in range(4):
        for hf in range(2):
            for i in range(4):
                a = vAcc + t * 16 + 8 * hf + 2 * i
                A('v_cvt_pk_bf16_f32', v(vQ0 + 4 * (2 * t + hf) + i), v(a), v(a + 1))
    ret(A)


def phase_s(A, opt):
    L = v(vLane)
    vKa, vVa, vM, vL = 4, 12, 16, 17
    vt = list(range(18, 26))
    t0, t1, t2, t3, t4, t5 = [v(x) for x in vt[:6]]
    vO, vS, vP, vF = vW, vW + 64, vW + 96, vW + 112
    A.label('LF_S')
    A('s_barrier')
    def dma_parts(slot):
        return kv_parts(A, opt, slot)
    A('s_cmp_eq_u32', s(sPre), '3')
    A('s_cbranch_scc1', 'LF_S_pre3')
    for sl in range(1, 3):
        for d in dma_parts(sl): d()
    A.label('LF_S_pre3')
    if opt.get('wotouch', False):
        A('s_lshl_b32', s(sTmp), s(sG), '1')
        A('s_add_u32', s(sTmp), s(sTmp), s(sR))
        A('s_mul_i32', s(sTmp), s(sTmp), str(512 * 1152))
        A('s_lshl_b32', s(sTmp2), s(sB), '3')
        A('s_add_u32', s(sTmp2), s(sTmp2), s(sWave))
        A('s_mul_i32', s(sTmp2), s(sTmp2), '2304')
        A('s_add_u32', s(sTmp), s(sTmp), s(sTmp2))
        A('v_min_u32', t0, '17', L)
        A('v_lshlrev_b32', t0, '7', t0)
        A('buffer_load_dword', v(3), t0, s(sWo, 4), s(sTmp), mods='offen ' + opt.get('wotflags', ''))
    A('s_lshl_b32', s(sTmp), s(sTeam), '16')
    A('v_and_b32', t0, '31', L)
    A('v_lshrrev_b32', t1, '5', L)
    A('v_and_b32', t2, '15', L)
    A('v_xor_b32', t2, t2, t1)
    A('v_lshlrev_b32', t0, '8', t0)
    A('v_add_u32', t0, s(sTmp), t0)
    for sidx in range(8):
        A('v_xor_b32', t3, str(2 * sidx), t2)
        A('v_lshl_add_u32', v(vKa + sidx), t3, '4', t0)
    A('v_bfe_u32', t0, L, '2', '2')
    A('v_and_b32', t2, '3', L)
    A('v_bfe_u32', t3, L, '4', '1')
    A('v_lshl_add_u32', t4, t1, '2', t0)
    A('v_lshlrev_b32', t4, '8', t4)
    A('v_lshl_add_u32', t4, t3, '5', t4)
    A('v_lshl_add_u32', t4, t2, '3', t4)
    A('v_add_u32', t4, s(sTmp), t4)
    for t in range(4):
        A('v_xor_b32', t5, str(t), t0)
        A('v_lshl_add_u32', v(vVa + t), t5, '6', t4)
    for r in range(64):
        A('v_mov_b32', v(vO + r), '0')
    vC = vP
    for r in range(16):
        A('v_mov_b32', v(vC + r), '0')
    A('v_mov_b32', v(vL), '0')
    A('v_mov_b32', v(vM), '0')
    sLo = 67
    A('s_mov_b32', s(sThr), '0xff800000')
    A('s_mov_b32', s(sLo), '0xff800000')
    A('s_mov_b32', s(sIt), '0')

    lg = Cnt(A)
    KBUF = [0, 32768]; VBUF = [16384, 49152]
    def kread(par, k):
        u, sidx = k >> 3, k & 7
        A('ds_read_b128', v(vF + 4 * (k % 8), 4), v(vKa + sidx), mods=f'offset:{KBUF[par] + u * 8192}')
        lg.issue(('K', k))
    def vslot(k):
        return (8 + k) % 12
    def vread(par, k):
        e, t = k >> 2, k & 3
        for h2 in range(2):
            A('ds_read_b64_tr_b16', v(vF + 4 * vslot(k) + 2 * h2, 2), v(vVa + t), mods=f'offset:{VBUF[par] + (16 * e + 8 * h2) * 256}')
            lg.issue(('V', k))

    A.waitcnt(vm=9 if opt.get('wotouch', False) else 8)
    A('s_barrier')
    A('s_cmp_eq_u32', s(sTeam), '0')
    A('s_cbranch_scc1', 'LF_S_nst')
    A('s_barrier')
    A.label('LF_S_nst')
    for k in range(4):
        kread(0, k)
    saved = list(lg.p)
    rare = []

    PVS = opt.get('pvs', 8)
    def tile_loop(team):
        A.label(f'LF_Sloop{team}')
        for par in range(2):
            kslot, vsl = 2 * par, 2 * par + 1
            mx = v(vt[0]); mx2 = v(vt[1])
            def max_items(u, first):
                it = []
                base = vS + 16 * u
                if first:
                    it.append(lambda: A('v_max3_f32', mx, v(base), v(base + 1), v(base + 2)))
                    rest = list(range(3, 16))
                else:
                    rest = list(range(0, 16))
                while len(rest) >= 2:
                    a, b = rest[0], rest[1]; rest = rest[2:]
                    it.append(lambda a=a, b=b: A('v_max3_f32', mx, mx, v(base + a), v(base + b)))
                if rest:
                    a = rest[0]
                    it.append(lambda a=a: A('v_max_f32', mx, mx, v(base + a)))
                return it
            m0items = max_items(0, True)
            dq = dma_parts(2 * (1 - par) + 1)
            kread(par, 4); kread(par, 5)
            for k in range(16):
                u, sidx = k >> 3, k & 7
                if k % 2 == 0:
                    lg.wait(('K', min(k + 1, 15)))
                if k == 12:
                    lg.wait(('K', 15))
                    A.waitcnt(vm=8)
                    A('s_barrier')
                    assert not dq
                    dq = dma_parts(kslot)
                acc = v(vS + 16 * u, 16)
                A('v_mfma_f32_32x32x16_bf16', acc, v(vF + 4 * (k % 8), 4), v(vQ0 + 4 * sidx, 4), v(vC, 16) if sidx == 0 else acc)
                if k + 6 < 16:
                    kread(par, k + 6)
                if k >= 12:
                    vread(par, k - 12)
                if k in (1, 3, 5, 7, 14):
                    dq.pop(0)()
                if k >= 11 and m0items:
                    m0items.pop(0)()
                    if m0items: m0items.pop(0)()
            for it in m0items:
                it()
            vread(par, 4); vread(par, 5); vread(par, 6)
            for it in max_items(1, False):
                it()
            A('v_mov_b32', mx2, mx)
            A('v_permlane32_swap_b32', mx, mx2)
            A('v_max_f32', mx, mx, mx2)
            A('v_cmp_lt_f32', 'vcc', s(sThr), mx)
            lr, lb = f'LF_rare{team}{par}', f'LF_back{team}{par}'
            A('s_cbranch_vccnz', lr)
            A.label(lb)
            rare.append((lr, lb))
            def p_items(e):
                it = []
                base = vS + 8 * e
                for r in range(8):
                    it.append(lambda r=r: A('v_exp_f32', v(base + r), v(base + r)))
                for r in range(8):
                    acc = vL if r % 2 == 0 else vM
                    it.append(lambda r=r, acc=acc: A('v_add_f32', v(acc), v(acc), v(base + r)))
                for i in range(4):
                    it.append(lambda i=i: A('v_cvt_pk_bf16_f32', v(base + i), v(base + 2 * i), v(base + 2 * i + 1)))
                return it
            for it in p_items(0):
                it()
            nxt = 7
            for k in range(16):
                e, t = k >> 2, k & 3
                if k == PVS:
                    lg.wait(('V', 15))
                    A.waitcnt(vm=8)
                    A('s_barrier')
                elif k % 2 == 0:
                    lg.wait(('V', k + 1))
                acc = v(vO + 16 * t, 16)
                A('v_mfma_f32_32x32x16_bf16', acc, v(vF + 4 * vslot(k), 4), v(vS + 8 * e, 4), acc)
                n_rd = 2 if k < 4 else 1
                for _ in range(n_rd):
                    if nxt < 16 and (nxt < 12 or nxt - 12 <= k):
                        while len(lg.p) > 13:
                            lg.wait(lg.p[1])
                        vread(par, nxt); nxt += 1
                if k in (1, 4, 6):
                    dq.pop(0)()
                if k >= 12:
                    kread(1 - par, k - 12)
                if e < 3:
                    items = p_items(e + 1)
                    for it in items[5 * t:5 * t + 5]: it()
            assert nxt == 16
            assert not dq
            assert lg.p == saved, (lg.p, saved)
        A('s_add_u32', s(sIt), s(sIt), '1')
        A('s_cmp_lt_u32', s(sIt), '4')
        A('s_cbranch_scc1', f'LF_Sloop{team}')
    tile_loop(0)
    A('s_cmp_lg_u32', s(sTeam), '0')
    A('s_cbranch_scc1', 'LF_S_nst2')
    A('s_barrier')
    A.label('LF_S_nst2')
    l2 = v(vt[0]); inv = v(vt[1])
    A('v_add_f32', v(vL), v(vL), v(vM))
    A('v_mov_b32', l2, v(vL))
    A('v_permlane32_swap_b32', v(vL), l2)
    A('v_add_f32', l2, l2, v(vL))
    A('v_rcp_f32', inv, l2)
    for t in range(4):
        for r in range(16):
            A('v_mul_f32', v(vO + 16 * t + r), v(vO + 16 * t + r), inv)
        for a in range(2):
            for i, r0 in enumerate((4 * a, 4 * a + 2, 8 + 4 * a, 8 + 4 * a + 2)):
                A('v_cvt_pk_bf16_f32', v(vQ0 + 8 * t + 4 * a + i), v(vO + 16 * t + r0), v(vO + 16 * t + r0 + 1))
    A.waitcnt(lgkm=0)
    A('s_cmp_lg_u32', s(sNext), '0')
    A('s_cbranch_scc1', 'LF_S_nowait')
    A.waitcnt(vm=0)
    A.label('LF_S_nowait')
    ret(A)
    for lr, lb in rare:
        mx = v(vt[0]); delta = v(vt[2]); alpha = v(vt[3])
        A.label(lr)
        A('v_max_f32', delta, s(sLo), mx)
        A('v_max_f32', alpha, '0', delta)
        A('v_sub_f32', alpha, '0', alpha)
        A('v_exp_f32', alpha, alpha)
        for r in range(32):
            A('v_sub_f32', v(vS + r), v(vS + r), delta)
        for r in range(16):
            A('v_sub_f32', v(vC + r), v(vC + r), delta)
        A('v_mul_f32', v(vL), v(vL), alpha)
        A('v_mul_f32', v(vM), v(vM), alpha)
        for r in range(64):
            A('v_mul_f32', v(vO + r), v(vO + r), alpha)
        A('s_mov_b32', s(sThr), f32(8.0))
        A('s_mov_b32', s(sLo), '0')
        A('s_branch', lb)


def phase_o(A, opt):
    L = v(vLane)
    vOd, vOe, vOa, vOx, vOb, vOw = 4, 8, 9, 13, 14, 15
    t0, t1, t2, t3, t4, t5 = [v(x) for x in range(20, 26)]
    vAcc, vFA, vFB = vW, vW + 80, vW + 120
    OT = 98304
    RING = 10240
    sM0R = sM0O
    A.label('LF_O')
    A('v_lshrrev_b32', t0, '3', L)
    A('v_and_b32', t1, '7', L)
    A('v_bfe_u32', t2, L, '4', '2')
    A('v_lshlrev_b32', t2, '1', t2)
    A('v_xor_b32', t1, t1, t2)
    A('v_mul_u32_u24', t0, '1152', t0)
    A('v_lshl_add_u32', v(vOd), t1, '4', t0)
    for jj in range(1, 4):
        A('v_add_u32', v(vOd + jj), str(jj * (8 * 1152 - 1024)), v(vOd))
    A('v_lshrrev_b32', t0, '1', L)
    A('v_and_b32', t1, '1', L)
    A('v_mul_u32_u24', t0, '1152', t0)
    A('v_lshl_add_u32', t0, t1, '4', t0)
    A('s_mul_i32', s(sTmp), s(sWave), '96')
    A('s_sub_u32', s(sTmp), '1024', s(sTmp))
    A('v_add_u32', v(vOe), s(sTmp), t0)
    A('s_lshl_b32', s(sWoBase), s(sG), '1')
    A('s_add_u32', s(sWoBase), s(sWoBase), s(sR))
    A('s_mul_i32', s(sWoBase), s(sWoBase), str(512 * 1152))
    A('s_lshl_b32', s(sTmp), s(sWave), '7')
    A('s_add_u32', s(sWoff), s(sWoBase), s(sTmp))
    A('s_mov_b32', s(sCk), '0')
    A('s_mul_i32', s(sM0R), s(sWave), str(RING))
    def wo_parts(st, team):
        parts = []
        for jj in range(4):
            def f(jj=jj):
                if jj == 0:
                    A('s_add_u32', 'm0', s(sM0R), str(st * 5120))
                A('buffer_load_dwordx4', v(vOd + jj), s(sWo, 4), s(sWoff), mods=f'offen offset:{jj*1024} lds')
                if jj == 3:
                    if team == 0:
                        A('s_add_u32', 'm0', s(sM0R), str(st * 5120 + 4096))
                        A('buffer_load_dwordx4', v(vOe), s(sWo, 4), s(sWoff), mods='offen lds')
                    A('s_add_u32', s(sCk), s(sCk), '1')
                    A('s_add_u32', s(sWoff), s(sWoff), str(32 * 1152))
                    A('s_cmp_eq_u32', s(sCk), '32')
                    A('s_cselect_b32', s(sWoff), OOB, s(sWoff))
            parts.append(f)
        return parts
    A('s_barrier')
    A('s_cmp_lg_u32', s(sTeam), '0')
    A('s_cbranch_scc1', 'LF_O_p1')
    for d in wo_parts(0, 0) + wo_parts(1, 0): d()
    A('s_branch', 'LF_O_p2')
    A.label('LF_O_p1')
    for d in wo_parts(0, 1) + wo_parts(1, 1): d()
    A.label('LF_O_p2')
    A('v_bfe_u32', t0, L, '4', '1')
    A('v_and_b32', t2, '15', L)
    A('v_lshrrev_b32', t1, '5', L)
    A('v_lshlrev_b32', t2, '4', t2)
    A('v_lshl_add_u32', t2, t0, '10', t2)
    A('v_lshl_add_u32', t2, t1, '8', t2)
    A('s_lshr_b32', s(sTmp), s(sWave), '1')
    A('s_lshl_b32', s(sTmp), s(sTmp), '14')
    A('s_and_b32', s(sTmp2), s(sWave), '1')
    A('s_lshl_b32', s(sTmp2), s(sTmp2), '11')
    A('s_add_u32', s(sTmp), s(sTmp), s(sTmp2))
    A('s_add_u32', s(sTmp), s(sTmp), str(OT))
    A('v_add_u32', v(vOw), s(sTmp), t2)
    def owrite(src):
        for t in range(4):
            for a in range(2):
                A('ds_write_b128', v(vOw), v(src + 8 * t + 4 * a, 4), mods=f'offset:{t * 4096 + a * 512}')
    owrite(vQ1)
    A('v_lshlrev_b32', t0, '4', L)
    A('v_add_u32', v(vOb), str(OT), t0)
    A('v_lshrrev_b32', t0, '2', L)
    A('v_bfe_u32', t1, L, '3', '2')
    A('v_and_b32', t2, '3', L)
    A('v_lshlrev_b32', t3, '7', t0)
    A('v_lshl_add_u32', t3, t2, '3', t3)
    A('v_add_u32', t3, s(sM0R), t3)
    for tn in range(4):
        A('v_xor_b32', t4, str(tn), t1)
        A('v_lshl_add_u32', v(vOa + tn), t4, '5', t3)
    A('v_lshlrev_b32', t3, '5', t0)
    A('v_lshl_add_u32', t3, t2, '3', t3)
    A('v_add_u32', v(vOx), s(sM0R), t3)
    for r in range(80):
        A('v_mov_b32', v(vAcc + r), '0')
    A.waitcnt(lgkm=0)
    A('s_barrier')

    def body(team):
        nt = 5 if team == 0 else 4
        G = nt
        lg = Cnt(A)
        def aread(st, tn):
            for e in range(2):
                if tn < 4:
                    A('ds_read_b64_tr_b16', v(vFA + 20 * st + 4 * tn + 2 * e, 2), v(vOa + tn), mods=f'offset:{st * 5120 + e * 2048}')
                else:
                    A('ds_read_b64_tr_b16', v(vFA + 20 * st + 16 + 2 * e, 2), v(vOx), mods=f'offset:{st * 5120 + 4096 + e * 512}')
                lg.issue(('A', st, tn))
        def bread(st, qt, off):
            A('ds_read_b128', v(vFB + 16 * st + 4 * qt, 4), v(vOb), mods=f'offset:{off + qt * 1024}')
            lg.issue(('B', st, qt))
        A.waitcnt(vm=G)
        for tn in range(nt): aread(0, tn)
        for qt in range(4): bread(0, qt, 0)
        A.waitcnt(lgkm=0); lg.p = []
        for d in wo_parts(0, team): d()
        A('s_mov_b32', s(sIt), '0')
        A.label(f'LF_Oloop{team}')
        for st in range(2):
            A.waitcnt(vm=G)
            rd = [(lambda tn=tn: aread(1 - st, tn)) for tn in range(nt)] + [(lambda qt=qt: bread(1 - st, qt, 4096 * (st + 1))) for qt in range(4)]
            dma = wo_parts(1 - st, team)
            n = 0
            for tn in range(nt):
                for qt in range(4):
                    acc = v(vAcc + (tn * 4 + qt) * 4, 4)
                    A('v_mfma_f32_16x16x32_bf16', acc, v(vFA + 20 * st + 4 * tn, 4), v(vFB + 16 * st + 4 * qt, 4), acc)
                    n += 1
                    if rd:
                        rd.pop(0)()
                    elif dma and n >= nt + 6 and (n - nt) % 2 == 0:
                        if len(dma) == 4:
                            lg.wait(('A', 1 - st, nt - 1))
                        dma.pop(0)()
            for d in dma: d()
            A.waitcnt(lgkm=0); lg.p = []
        A('v_add_u32', v(vOb), '8192', v(vOb))
        A('s_add_u32', s(sIt), s(sIt), '1')
        A('s_cmp_lg_u32', s(sIt), '8')
        A('s_cbranch_scc1', f'LF_O_nomid{team}')
        A('s_barrier')
        owrite(vQ0)
        A('v_subrev_u32', v(vOb), '65536', v(vOb))
        A.waitcnt(lgkm=0)
        A('s_barrier')
        for qt in range(4): bread(0, qt, 0)
        A.waitcnt(lgkm=0); lg.p = []
        A.label(f'LF_O_nomid{team}')
        A('s_cmp_lt_u32', s(sIt), '16')
        A('s_cbranch_scc1', f'LF_Oloop{team}')
        A.waitcnt(vm=0)
        A('v_lshlrev_b32', t0, '4', L)
        A('s_lshl_b32', s(sTmp), s(sWave), '13')
        A('s_add_u32', s(sTmp), s(sTmp), s(sPoff))
        for tn in range(nt):
            for qp in range(2):
                d = vFA + 4 * (2 * tn + qp)
                for k in range(2):
                    a = vAcc + (tn * 4 + 2 * qp + k) * 4
                    A('v_cvt_pk_bf16_f32', v(d + 2 * k), v(a), v(a + 1))
                    A('v_cvt_pk_bf16_f32', v(d + 2 * k + 1), v(a + 2), v(a + 3))
                if tn == 2 and qp == 0:
                    A('s_add_u32', s(sTmp), s(sTmp), '4096')
                if tn == 4 and qp == 0:
                    A('s_lshl_b32', s(sTmp), s(sWave), '11')
                    A('s_add_u32', s(sTmp), s(sTmp), s(sPoff))
                    A('s_add_u32', s(sTmp), s(sTmp), '65536')
                A('buffer_store_dwordx4', v(d, 4), t0, s(sWS, 4), s(sTmp), mods=f'offen offset:{((tn % 2) * 2 + qp) * 1024} {opt.get("pflags", "")}')
    A('s_cmp_lg_u32', s(sTeam), '0')
    A('s_cbranch_scc1', 'LF_O_b1')
    body(0)
    A('s_branch', 'LF_O_ns')
    A.label('LF_O_b1')
    body(1)
    A.label('LF_O_ns')
    ret(A)


def reduce_kernel(A, opt):
    kn = 'reduce_kernel'
    A.raw('.globl %s\n.p2align 8\n.type %s,@function' % (kn, kn))
    A.label(kn)
    A('s_cmp_ge_u32', 's2', str(64 * 18))
    A('s_cbranch_scc1', 'LR_done')
    A('s_load_dwordx2', s(16, 2), s(0, 2), '80')
    A('s_load_dwordx2', s(18, 2), s(0, 2), '96')
    A('s_mul_i32', s(20), 's2', '3641')
    A('s_lshr_b32', s(20), s(20), '16')
    A('s_mul_i32', s(21), s(20), '18')
    A('s_sub_u32', s(21), 's2', s(21))
    A('v_lshrrev_b32', v(1), '6', v(0))
    A('v_readfirstlane_b32', s(22), v(1))
    A('s_lshl_b32', s(23), s(21), '2')
    A('s_add_u32', s(23), s(23), s(22))
    A('s_lshr_b32', s(24), s(23), '1')
    A('s_and_b32', s(25), s(23), '1')
    A('v_and_b32', v(1), '63', v(0))
    A('v_lshlrev_b32', v(2), '4', v(1))
    A.waitcnt(lgkm=0)
    srd(A, 4, 16, OUT_BYTES)
    srd(A, 8, 18, WS_BYTES)
    A('s_mul_i32', s(26), s(20), str(8 * PART))
    A('s_lshl_b32', s(27), s(23), '10')
    A('s_add_u32', s(26), s(26), s(27))
    A('s_and_b32', s(28), s(20), '1')
    for g in range(4):
        A('s_add_u32', s(30), s(26), str(g * 2 * PART))
        A('buffer_load_dwordx4', v(8 + 4 * g, 4), v(2), s(8, 4), s(30), mods='offen ' + opt.get('rflags', ''))
    A('s_and_b32', s(31), s(20), '31')
    A('s_lshr_b32', s(32), s(20), '5')
    A('s_lshl_b32', s(31), s(31), '6')
    A('s_lshl_b32', s(33), s(25), '5')
    A('s_add_u32', s(31), s(31), s(33))
    A('s_mul_i32', s(31), s(31), '2304')
    A('s_mul_i32', s(32), s(32), '1152')
    A('s_add_u32', s(31), s(31), s(32))
    A('s_lshl_b32', s(33), s(24), '5')
    A('s_add_u32', s(31), s(31), s(33))
    A('v_and_b32', v(3), '15', v(1))
    A('v_mul_u32_u24', v(3), '2304', v(3))
    A('v_lshrrev_b32', v(4), '4', v(1))
    A('v_lshl_add_u32', v(3), v(4), '3', v(3))
    for k in range(4):
        A.waitcnt(vm=3 - k)
        for d in range(4):
            src = v(8 + 4 * k + d)
            if k == 0:
                A('v_lshlrev_b32', v(32 + 2 * d), '16', src)
                A('v_and_b32', v(33 + 2 * d), '0xffff0000', src)
            else:
                A('v_lshlrev_b32', v(40), '16', src)
                A('v_and_b32', v(41), '0xffff0000', src)
                A('v_add_f32', v(32 + 2 * d), v(32 + 2 * d), v(40))
                A('v_add_f32', v(33 + 2 * d), v(33 + 2 * d), v(41))
    for d in range(4):
        A('v_cvt_pk_bf16_f32', v(44 + d), v(32 + 2 * d), v(33 + 2 * d))
    A('buffer_store_dwordx2', v(44, 2), v(3), s(4, 4), s(31), mods='offen ' + opt.get('oflags', ''))
    A('s_add_u32', s(31), s(31), str(16 * 2304))
    A('buffer_store_dwordx2', v(46, 2), v(3), s(4, 4), s(31), mods='offen ' + opt.get('oflags', ''))
    A.label('LR_done')
    A('s_endpgm')
    return kn


def kd(name, vgpr, sgpr):
    return f'''.amdhsa_kernel {name}
  .amdhsa_next_free_vgpr {vgpr}
  .amdhsa_next_free_sgpr {sgpr}
  .amdhsa_accum_offset {vgpr}
  .amdhsa_group_segment_fixed_size 0
  .amdhsa_kernarg_size 104
  .amdhsa_user_sgpr_count 2
  .amdhsa_user_sgpr_kernarg_segment_ptr 1
  .amdhsa_system_sgpr_workgroup_id_x 1
.end_amdhsa_kernel
'''

def generate(opt):
    A = Asm()
    ka = fused_kernel(A, opt)
    kb = reduce_kernel(A, opt)
    errs = A.check_branches()
    for e in errs:
        print('HAZARD:', e, file=sys.stderr)
    assert not errs
    hdr = [l for l in HDR if l.startswith(';') and '@launch' not in l]
    out = '\n'.join(hdr) + '\n'
    out += f'; @launch kernel={ka} grid=(256,1,1) block=(512,1,1) lds=163840\n'
    out += f'; @launch kernel={kb} grid=(1152,1,1) block=(256,1,1) lds=0\n'
    out += '.amdgcn_target "amdgcn-amd-amdhsa--gfx950"\n.text\n'
    out += A.text().replace('CODEBYTES', 'LCODE_END-fused_kernel')
    out += 'LCODE_END:\n'
    out += '.section .rodata,"a"\n.p2align 6\n'
    out += kd(ka, 256, 102)
    out += '.p2align 6\n'
    out += kd(kb, 48, 40)
    return out

if __name__ == '__main__':
    opt = {}
    for a in sys.argv[2:]:
        k, val = a.split('=')
        opt[k] = eval(val)
    txt = generate(opt)
    open(sys.argv[1], 'w').write(txt)
    print('wrote', sys.argv[1], len(txt))
```

```python
import sys, math, struct
sys.path.insert(0, 'gen')
from asmlib import *

NAME = 'concat_heads__gqa_block_cached__gqa_block_cached__near_ridge'
HDR = open('cdna_kernels/' + NAME + '.s.ref').read().split('\n')

X_BYTES = 32 * 64 * 576 * 2
KV_BYTES = 32 * 16 * 512 * 128 * 2
W_BYTES = 576 * 4096 * 2
OUT_BYTES = 32 * 64 * 1152 * 2
PART = 64 * 576 * 2
WS_BYTES = 64 * 8 * PART
OOB = '0x7f000000'

def f32(x):
    return hex(int.from_bytes(struct.pack('<f', x), 'little'))

class Cnt:
    def __init__(self, A, maxn=15):
        self.A = A; self.p = []; self.maxn = maxn
    def issue(self, tag):
        self.p.append(tag)
        assert len(self.p) <= self.maxn, len(self.p)
    def wait(self, tag):
        idx = None
        for k, t in enumerate(self.p):
            if t == tag:
                idx = k
        if idx is None:
            return
        self.A.waitcnt(lgkm=len(self.p) - idx - 1)
        self.p = self.p[idx + 1:]

def srd(A, d, plo, nbytes):
    A('s_mov_b32', s(d), s(plo))
    A('s_and_b32', s(d + 1), s(plo + 1), '0xffff')
    A('s_mov_b32', s(d + 2), hex(nbytes))
    A('s_mov_b32', s(d + 3), '0x00020000')

sX, sK, sV, sWq, sWo, sWS = 4, 8, 12, 16, 20, 24
sWave, sTeam, sTmp, sTmp2, sType, sC, sThr = 28, 29, 30, 31, 32, 33, 34
sR, sIt, sT, sKVoff, sKVbase, sM0KV = 35, 36, 37, 38, 39, 40
sWbase, sXbase, sWoff, sXoff, sCk, sXk = 41, 42, 43, 44, 45, 46
sG, sB, sP, sW3 = 47, 48, 49, 50
sM0W, sM0X, sWoBase, sPoff, sFlagZ, sFlagS = 51, 52, 53, 54, 55, 56
sRet = 58
sM0O = 60
sLd = 70
sStamp = 72
vTid, vLane = 0, 1
vA0 = 4
vQ0, vQ1 = 32, 64
vKd, vVd = 27, 31
sKoff, sVoff, sKn, sVn, sPre, sNext, sJump = 38, 57, 37, 63, 64, 65, 66
vW = 96


def fused_kernel(A, opt):
    kn = 'fused_kernel'
    A.raw('.globl %s\n.p2align 8\n.type %s,@function' % (kn, kn))
    A.label(kn)
    L = v(vLane)
    nst = [0]
    def stamp():
        if opt.get('stamp'):
            A('s_memrealtime', s(sStamp + 2 * nst[0], 2))
            A('s_memtime', s(70, 2))
            A.waitcnt(lgkm=0)
            A('s_mov_b32', s(sStamp + 2 * nst[0] + 1), s(70))
            nst[0] += 1

    A('s_cmp_ge_u32', 's2', '256')
    A('s_cbranch_scc1', 'LF_done')
    if opt.get('codewarm', False):
        A('s_getpc_b64', s(96, 2))
        A('s_and_b32', s(96), s(96), '0xffffff00')
        A('s_and_b32', s(97), s(97), '0xffff')
        A('s_mov_b32', s(98), 'CODEBYTES')
        A('s_mov_b32', s(99), '0x00020000')
        A('v_lshlrev_b32', v(2), '7', v(vTid))
        A('buffer_load_dword', v(3), v(2), s(96, 4), '0', mods='offen ' + opt.get('cflags', ''))
    A('s_load_dwordx8', s(72, 8), s(0, 2), '0')
    A('s_load_dwordx2', s(80, 2), s(0, 2), '32')
    A('s_load_dwordx8', s(84, 8), s(0, 2), '40')
    A('s_load_dwordx2', s(92, 2), s(0, 2), '72')
    A('s_load_dwordx2', s(94, 2), s(0, 2), '96')
    A('s_and_b32', s(sTmp), 's2', '7')
    A('s_lshr_b32', s(sP), s(sTmp), '2')
    A('s_and_b32', s(sG), s(sTmp), '3')
    A('s_lshr_b32', s(sB), 's2', '3')
    A('s_add_u32', s(sType), s(sB), s(sG))
    A('s_and_b32', s(sType), s(sType), '1')
    if opt.get('typemode') == 'p': A('s_mov_b32', s(sType), s(sP))
    if opt.get('typemode') == 'g': A('s_and_b32', s(sType), s(sG), '1')
    A('v_and_b32', L, '63', v(vTid))
    A('v_lshrrev_b32', v(2), '6', v(vTid))
    A('v_readfirstlane_b32', s(sWave), v(2))
    A('s_lshr_b32', s(sTeam), s(sWave), '2')
    A('s_and_b32', s(sW3), s(sWave), '3')
    A('s_mov_b32', s(sC), f32((128 ** -0.5) * math.log2(math.e)))
    A('s_mov_b32', s(sThr), f32(8.0 / ((128 ** -0.5) * math.log2(math.e))))
    A.waitcnt(lgkm=0)
    A('s_cmp_eq_u32', s(sP), '0')
    for k in range(4):
        A('s_cselect_b64', s(72 + 2 * k, 2), s(72 + 2 * k, 2), s(84 + 2 * k, 2))
    A('s_cselect_b64', s(80, 2), s(80, 2), s(92, 2))
    srd(A, sX, 72, X_BYTES)
    srd(A, sK, 74, KV_BYTES)
    srd(A, sV, 76, KV_BYTES)
    srd(A, sWq, 78, W_BYTES)
    srd(A, sWo, 80, W_BYTES)
    srd(A, sWS, 94, (0x10000000 if opt.get('stamp') else WS_BYTES))
    A('s_lshl_b32', s(sKVbase), s(sB), '4')
    A('s_lshl_b32', s(sTmp), s(sG), '2')
    A('s_add_u32', s(sKVbase), s(sKVbase), s(sTmp))
    A('s_add_u32', s(sKVbase), s(sKVbase), s(sTeam))
    A('s_lshl_b32', s(sKVbase), s(sKVbase), '17')
    A('s_lshl_b32', s(sTmp), s(sW3), '12')
    A('s_add_u32', s(sKVbase), s(sKVbase), s(sTmp))
    A('s_lshl_b32', s(sM0KV), s(sTeam), '16')
    A('s_add_u32', s(sM0KV), s(sM0KV), s(sTmp))
    A('s_lshl_b32', s(sM0W), s(sWave), '12')
    A('s_lshl_b32', s(sM0X), s(sWave), '10')
    A('s_lshl_b32', s(sXbase), s(sB), '6')
    A('s_lshl_b32', s(sTmp), s(sWave), '3')
    A('s_add_u32', s(sXbase), s(sXbase), s(sTmp))
    A('s_mulk_i32', s(sXbase), '1152')
    A('s_lshl_b32', s(sPoff), s(sP), '5')
    A('s_add_u32', s(sPoff), s(sPoff), s(sB))
    A('s_lshl_b32', s(sPoff), s(sPoff), '2')
    A('s_add_u32', s(sPoff), s(sPoff), s(sG))
    A('s_mul_i32', s(sPoff), s(sPoff), str(2 * PART))
    A('v_lshrrev_b32', v(4), '4', L)
    A('v_and_b32', v(5), '15', L)
    for jj in range(4):
        A('v_add_u32', v(6), str(4 * jj), v(4))
        A('v_xor_b32', v(6), v(6), v(5))
        A('v_lshlrev_b32', v(6), '4', v(6))
        A('v_lshl_add_u32', v(vKd + jj), v(4), '8', v(6))
    A('v_lshlrev_b32', v(6), '2', v(4))
    A('v_xor_b32', v(6), v(6), v(5))
    A('v_lshlrev_b32', v(6), '4', v(6))
    A('v_lshl_add_u32', v(vVd), v(4), '8', v(6))
    if opt.get('q0touch', False):
        A('s_lshr_b32', s(sTmp2), s(sB), '1')
        A('s_lshl_b32', s(sTmp2), s(sTmp2), '3')
        A('s_add_u32', s(sTmp2), s(sTmp2), s(sWave))
        A('s_mul_i32', s(sTmp2), s(sTmp2), '36')
        A('v_min_u32', v(4), '35', L)
        A('v_add_u32', v(4), s(sTmp2), v(4))
        A('v_and_b32', v(5), '7', v(4))
        A('v_lshrrev_b32', v(4), '3', v(4))
        A('v_lshlrev_b32', v(4), '13', v(4))
        A('v_lshl_add_u32', v(4), v(5), '7', v(4))
        A('s_lshl_b32', s(sTmp), s(sG), '1')
        A('s_add_u32', s(sTmp), s(sTmp), s(sType))
        A('s_lshl_b32', s(sTmp), s(sTmp), '10')
        A('buffer_load_dword', v(3), v(4), s(sWq, 4), s(sTmp), mods='offen nt')
        A('v_lshlrev_b32', v(4), '7', L)
        A('buffer_load_dword', v(3), v(4), s(sX, 4), s(sXbase), mods='offen nt')
        A('buffer_load_dword', v(3), v(4), s(sX, 4), s(sXbase), mods='offen offset:1024 nt')
    if opt.get('tlbwarm', False):
        A('s_cmp_lg_u32', s(sWave), '0')
        A('s_cbranch_scc1', 'LF_ntw')
        A('v_lshlrev_b32', v(4), '13', L)
        A('buffer_load_dword', v(3), v(4), s(sK, 4), s(sKVbase), mods='offen nt')
        A('buffer_load_dword', v(3), v(4), s(sV, 4), s(sKVbase), mods='offen nt')
        A.label('LF_ntw')
    stamp()

    def kvinit(r):
        A('s_add_u32', s(sKoff), s(sKVbase), str(r << 18))
        if opt.get('kv_oob'): A('s_mov_b32', s(sKoff), '0x70000000')
        A('s_mov_b32', s(sVoff), s(sKoff))
        A('s_mov_b32', s(sKn), '0')
        A('s_mov_b32', s(sVn), '0')
    def call(lbl):
        A('s_call_b64', s(sRet, 2), lbl)
        A('s_nop', '7'); A('s_nop', '7')
    def setr(r):
        A('s_mov_b32', s(sR), str(r))
    def mov32(dst, src):
        for i in range(32):
            A('v_mov_b32', v(dst + i), v(src + i))
    def swap32():
        for i in range(32):
            A('v_swap_b32', v(vQ0 + i), v(vQ1 + i))

    setr(1)
    rot = opt.get('rot', 1)
    if rot == 0:
        A('s_mov_b32', s(sJump), '0')
    elif rot == 1:
        A('s_and_b32', s(sJump), s(sB), '7')
    elif rot == 2:
        A('s_lshl_b32', s(sJump), s(sTeam), '2')
        A('s_add_u32', s(sJump), s(sJump), s(sB))
        A('s_add_u32', s(sJump), s(sJump), s(sG))
        A('s_and_b32', s(sJump), s(sJump), '7')
    A('s_lshl_b32', s(sKoff), s(sJump), '14')
    A('s_add_u32', s(sKoff), s(sKoff), s(sKVbase))
    A('s_mov_b32', s(sVoff), s(sKoff))
    A('s_mov_b32', s(sKn), '0')
    A('s_mov_b32', s(sVn), '0')
    A('s_mov_b32', s(sPre), '1'); A('s_mov_b32', s(sNext), '1')
    call('LF_Q'); stamp()
    setr(0)
    call('LF_S'); stamp()
    swap32()
    setr(1)
    A('s_mov_b32', s(sPre), '3'); A('s_mov_b32', s(sNext), '0')
    call('LF_S'); stamp()
    setr(0)
    call('LF_O'); stamp()
    A.label('LF_end')
    if opt.get('stamp'):
        A('s_lshl_b32', s(sTmp), 's2', '3')
        A('s_add_u32', s(sTmp), s(sTmp), s(sWave))
        A('s_lshl_b32', s(sTmp), s(sTmp), '6')
        A('s_add_u32', s(sTmp), s(sTmp), hex(200 << 20))
        A('v_mov_b32', v(6), '0')
        A('s_mov_b64', 'exec', '1')
        for i in range(7):
            A('v_mov_b32', v(4), s(sStamp + 2 * i))
            A('v_mov_b32', v(5), s(sStamp + 2 * i + 1))
            A('buffer_store_dwordx2', v(4, 2), v(6), s(sWS, 4), s(sTmp), mods=f'offen offset:{8*i}')
            A.waitcnt(vm=0)
    A.label('LF_done')
    A('s_endpgm')

    phase_q(A, opt)
    phase_s(A, opt)
    phase_o(A, opt)
    return kn


def kv_parts(A, opt, slot):
    kvflags = opt.get('kvflags', 'nt')
    parts = []
    isk = slot % 2 == 0
    so, sn = (sKoff, sKn) if isk else (sVoff, sVn)
    for jj in range(4):
        def f(jj=jj):
            if jj == 0:
                A('s_add_u32', 'm0', s(sM0KV), str(slot * 16384))
            if isk:
                A('buffer_load_dwordx4', v(vKd + jj), s(sK, 4), s(so), mods=f'offen offset:{jj*1024} {kvflags} lds')
            else:
                A('buffer_load_dwordx4', v(vVd), s(sV, 4), s(so), mods=f'offen offset:{jj*1024} {kvflags} lds')
            if jj == 3:
                A('s_add_u32', s(sn), s(sn), '1')
                A('s_add_u32', s(sTmp), s(sn), s(sJump))
                A('s_and_b32', s(sTmp), s(sTmp), '7')
                A('s_lshl_b32', s(sTmp), s(sTmp), '14')
                A('s_lshr_b32', s(sTmp2), s(sn), '3')
                A('s_lshl_b32', s(sTmp2), s(sTmp2), '18')
                A('s_add_u32', s(sTmp), s(sTmp), s(sTmp2))
                A('s_add_u32', s(so), s(sTmp), s(sKVbase))
                A('s_cmp_ge_u32', s(sn), '16')
                A('s_cselect_b32', s(so), OOB, s(so))
        parts.append(f)
    return parts


def ret(A):
    A('s_nop', '7'); A('s_nop', '7')
    A('s_setpc_b64', s(sRet, 2))


def phase_q(A, opt):
    L = v(vLane)
    vWd, vWa, vXd, vXa = 4, 8, 12, 13
    t0, t1, t2, t3, t4, t5 = [v(x) for x in range(21, 27)]
    vAcc, vFA, vFB = vW, vW + 64, vW + 96
    WST = [98304, 16384, 131072]
    XSL = [49152, 57344, 81920]
    A.label('LF_Q')
    for jj in range(4):
        A('v_xor_b32', t0, str(4 * jj), L)
        A('v_lshlrev_b32', t0, '4', t0)
        A('v_add_u32', v(vWd + jj), str(jj * (8192 - 1024)), t0)
    A('s_and_b32', s(sTmp), s(sWave), '1')
    A('s_lshl_b32', s(sTmp), s(sTmp), '2')
    A('v_lshrrev_b32', t0, '4', L)
    A('v_add_u32', t0, s(sTmp), t0)
    A('v_and_b32', t1, '7', L)
    A('v_xor_b32', t0, t0, t1)
    A('v_lshlrev_b32', t0, '4', t0)
    A('v_lshrrev_b32', t1, '3', L)
    A('v_mul_u32_u24', t1, '1152', t1)
    A('v_add_u32', v(vXd), t0, t1)
    A('s_lshl_b32', s(sWbase), s(sG), '1')
    A('s_add_u32', s(sWbase), s(sWbase), s(sR))
    A('s_lshl_b32', s(sWbase), s(sWbase), '10')
    A('s_lshl_b32', s(sTmp), s(sWave), '15')
    A('s_add_u32', s(sWbase), s(sWbase), s(sTmp))
    A('s_mul_i32', s(sTmp), s(sB), '57')
    A('s_lshr_b32', s(sTmp), s(sTmp), '9')
    A('s_mul_i32', s(sTmp), s(sTmp), '9')
    A('s_sub_u32', s(sXk), s(sB), s(sTmp))
    A('s_lshl_b32', s(sCk), s(sXk), '1')
    A('s_mov_b32', s(sFlagS), '0')

    def w_parts(st):
        parts = []
        for jj in range(4):
            def f(jj=jj):
                if jj == 0:
                    A('s_lshl_b32', s(sWoff), s(sCk), '18')
                    A('s_add_u32', s(sWoff), s(sWoff), s(sWbase))
                    A('s_add_u32', s(sCk), s(sCk), '1')
                    A('s_cmp_eq_u32', s(sCk), '18')
                    A('s_cselect_b32', s(sCk), '0', s(sCk))
                    A('s_add_u32', s(sFlagS), s(sFlagS), '1')
                    A('s_cmp_eq_u32', s(sFlagS), '18')
                    A('s_cselect_b32', s(sTmp), '1024', '0')
                    A('s_sub_u32', s(sWbase), s(sWbase), s(sTmp))
                A('s_add_u32', 'm0', s(sM0W), str(WST[st]))
                A('buffer_load_dwordx4', v(vWd + jj), s(sWq, 4), s(sWoff), mods=f'offen offset:{jj*1024} {opt.get("wqflags", "")} lds')
            parts.append(f)
        return parts
    def x_part(sl):
        def f():
            A('s_lshl_b32', s(sXoff), s(sXk), '7')
            A('s_add_u32', s(sXoff), s(sXoff), s(sXbase))
            A('s_add_u32', s(sXk), s(sXk), '1')
            A('s_cmp_eq_u32', s(sXk), '9')
            A('s_cselect_b32', s(sXk), '0', s(sXk))
            A('s_add_u32', 'm0', s(sM0X), str(XSL[sl]))
            A('buffer_load_dwordx4', v(vXd), s(sX, 4), s(sXoff), mods='offen ' + opt.get('xflags', '') + ' lds')
        return [f]
    A('s_barrier')
    for d in x_part(0) + w_parts(0):
        d()
    A('v_bfe_u32', t0, L, '2', '2')
    A('v_lshrrev_b32', t1, '5', L)
    A('v_and_b32', t2, '1', L)
    A('v_bfe_u32', t3, L, '1', '1')
    A('v_lshl_add_u32', t2, t2, '1', t3)
    A('v_bfe_u32', t3, L, '4', '1')
    A('v_lshl_add_u32', t4, t1, '3', t0)
    A('v_lshlrev_b32', t4, '10', t4)
    A('v_lshl_add_u32', t4, t3, '5', t4)
    A('v_lshl_add_u32', t4, t2, '3', t4)
    A('s_lshr_b32', s(sTmp), s(sWave), '1')
    A('s_lshl_b32', s(sTmp), s(sTmp), '8')
    A('v_add_u32', t4, s(sTmp), t4)
    for t in range(4):
        A('v_xor_b32', t5, str(t), t0)
        A('v_lshl_add_u32', v(vWa + t), t5, '6', t4)
    vWa2 = 17
    for t in range(4):
        A('v_add_u32', v(vWa2 + t), '0x18000', v(vWa + t))
    A('v_and_b32', t0, '31', L)
    A('s_and_b32', s(sTmp), s(sWave), '1')
    A('s_lshl_b32', s(sTmp), s(sTmp), '5')
    A('v_add_u32', t0, s(sTmp), t0)
    A('v_bfe_u32', t2, L, '1', '3')
    A('v_xor_b32', t2, t2, t1)
    for s4 in range(4):
        A('v_xor_b32', t3, str(2 * s4), t2)
        A('v_lshlrev_b32', t3, '4', t3)
        A('v_lshl_add_u32', v(vXa + s4), t0, '7', t3)
        A('v_add_u32', v(vXa + s4), '49152', v(vXa + s4))
    for r in range(64):
        A('v_mov_b32', v(vAcc + r), '0')

    lg = Cnt(A)
    def reads(kk, part):
        c, sidx = (kk >> 1) % 3, kk & 1
        X, s4 = (kk >> 2) % 3, kk & 3
        par = kk & 1
        base = WST[c]
        if part == 'B':
            A('ds_read_b128', v(vFB + 4 * par, 4), v(vXa + s4), mods=f'offset:{XSL[X] - 49152}')
            lg.issue(('B', par))
        else:
            t = part
            for e in range(2):
                off = base + (16 * sidx + 4 * e) * 1024
                if base >= 98304:
                    A('ds_read_b64_tr_b16', v(vFA + 16 * par + 4 * t + 2 * e, 2), v(vWa2 + t), mods=f'offset:{off - 98304}')
                else:
                    A('ds_read_b64_tr_b16', v(vFA + 16 * par + 4 * t + 2 * e, 2), v(vWa + t), mods=f'offset:{off}')
                lg.issue(('A', par, t))
    def kstep(kk, nxt, sync, dma):
        par = kk & 1
        if sync is not None:
            A.waitcnt(vm=sync, lgkm=0); lg.p = []
            A('s_barrier')
        dma = list(dma)
        for t in range(4):
            lg.wait(('A', par, t)); lg.wait(('B', par))
            acc = v(vAcc + 16 * t, 16)
            A('v_mfma_f32_32x32x16_bf16', acc, v(vFA + 16 * par + 4 * t, 4), v(vFB + 4 * par, 4), acc)
            if nxt:
                if t == 0: reads(kk + 1, 'B'); reads(kk + 1, 0)
                elif t == 1: reads(kk + 1, 1); reads(kk + 1, 2)
                elif t == 2: reads(kk + 1, 3)
            if dma and t != 0:
                dma.pop(0)()
        return dma

    for d in w_parts(1) + x_part(1):
        d()
    A.waitcnt(vm=5)
    A('s_barrier')
    reads(0, 'B')
    for t in range(4): reads(0, t)
    for d in w_parts(2):
        d()
    saved = list(lg.p)
    A('s_mov_b32', s(sIt), '0')
    def window(last):
        carry = []
        for c in range(6):
            carry = kstep(2 * c, True, None, carry)
            assert not carry
            if last and c >= 3:
                vm = {3: 4, 4: 0, 5: None}[c]
                if c == 5:
                    kstep(2 * c + 1, False, None, [])
                else:
                    kstep(2 * c + 1, True, vm, [])
                    if c == opt.get('wotc', 4):
                        A('s_mul_i32', s(sTmp), s(sG), str(1024 * 1152))
                        A('s_lshl_b32', s(sTmp2), s(sB), '3')
                        A('s_add_u32', s(sTmp2), s(sTmp2), s(sWave))
                        A('s_mul_i32', s(sTmp2), s(sTmp2), '4608')
                        A('s_add_u32', s(sTmp), s(sTmp), s(sTmp2))
                        A('v_min_u32', t0, '35', L)
                        A('v_lshlrev_b32', t0, '7', t0)
                        A('buffer_load_dword', v(3), t0, s(sWo, 4), s(sTmp), mods='offen')
                    if c == 4:
                        A('s_cmp_eq_u32', s(sPre), '0')
                        A('s_cbranch_scc1', 'LF_Q_nopre')
                        for d in kv_parts(A, opt, 0): d()
                        A.label('LF_Q_nopre')
                continue
            vm = 4 if c % 2 == 0 else 5
            newp = w_parts(c % 3)
            if c % 2 == 0 and not (last and c == 2):
                newp = newp + x_part(((c >> 1) + 2) % 3)
            carry = kstep(2 * c + 1, True, vm, newp)
        return carry
    A.label('LF_Qloop')
    carry = window(False)
    for d in carry: d()
    assert lg.p == saved, (lg.p, saved)
    A('s_add_u32', s(sIt), s(sIt), '1')
    A('s_cmp_lg_u32', s(sIt), '3')
    A('s_cbranch_scc1', 'LF_Q_nomid')
    for r in range(64):
        A('v_mul_f32', v(vAcc + r), s(sC), v(vAcc + r))
    for t in range(4):
        for hf in range(2):
            for i in range(4):
                a = vAcc + t * 16 + 8 * hf + 2 * i
                A('v_cvt_pk_bf16_f32', v(vQ1 + 4 * (2 * t + hf) + i), v(a), v(a + 1))
    for r in range(64):
        A('v_mov_b32', v(vAcc + r), '0')
    A.label('LF_Q_nomid')
    A('s_cmp_lt_u32', s(sIt), '5')
    A('s_cbranch_scc1', 'LF_Qloop')
    window(True)
    assert not lg.p
    for r in range(64):
        A('v_mul_f32', v(vAcc + r), s(sC), v(vAcc + r))
    for t in range(4):
        for hf in range(2):
            for i in range(4):
                a = vAcc + t * 16 + 8 * hf + 2 * i
                A('v_cvt_pk_bf16_f32', v(vQ0 + 4 * (2 * t + hf) + i), v(a), v(a + 1))
    ret(A)


def phase_s(A, opt):
    L = v(vLane)
    vKa, vVa, vM, vL = 4, 12, 16, 17
    vt = list(range(18, 26))
    t0, t1, t2, t3, t4, t5 = [v(x) for x in vt[:6]]
    vO, vS, vP, vF = vW, vW + 64, vW + 96, vW + 112
    A.label('LF_S')
    A('s_barrier')
    def dma_parts(slot):
        return kv_parts(A, opt, slot)
    A('s_cmp_eq_u32', s(sPre), '3')
    A('s_cbranch_scc1', 'LF_S_pre3')
    for sl in range(1, 3):
        for d in dma_parts(sl): d()
    A.label('LF_S_pre3')
    if opt.get('wotouch', False):
        A('s_lshl_b32', s(sTmp), s(sG), '1')
        A('s_add_u32', s(sTmp), s(sTmp), s(sR))
        A('s_mul_i32', s(sTmp), s(sTmp), str(512 * 1152))
        A('s_lshl_b32', s(sTmp2), s(sB), '3')
        A('s_add_u32', s(sTmp2), s(sTmp2), s(sWave))
        A('s_mul_i32', s(sTmp2), s(sTmp2), '2304')
        A('s_add_u32', s(sTmp), s(sTmp), s(sTmp2))
        A('v_min_u32', t0, '17', L)
        A('v_lshlrev_b32', t0, '7', t0)
        A('buffer_load_dword', v(3), t0, s(sWo, 4), s(sTmp), mods='offen ' + opt.get('wotflags', ''))
    A('s_lshl_b32', s(sTmp), s(sTeam), '16')
    A('v_and_b32', t0, '31', L)
    A('v_lshrrev_b32', t1, '5', L)
    A('v_and_b32', t2, '15', L)
    A('v_xor_b32', t2, t2, t1)
    A('v_lshlrev_b32', t0, '8', t0)
    A('v_add_u32', t0, s(sTmp), t0)
    for sidx in range(8):
        A('v_xor_b32', t3, str(2 * sidx), t2)
        A('v_lshl_add_u32', v(vKa + sidx), t3, '4', t0)
    A('v_bfe_u32', t0, L, '2', '2')
    A('v_and_b32', t2, '3', L)
    A('v_bfe_u32', t3, L, '4', '1')
    A('v_lshl_add_u32', t4, t1, '2', t0)
    A('v_lshlrev_b32', t4, '8', t4)
    A('v_lshl_add_u32', t4, t3, '5', t4)
    A('v_lshl_add_u32', t4, t2, '3', t4)
    A('v_add_u32', t4, s(sTmp), t4)
    for t in range(4):
        A('v_xor_b32', t5, str(t), t0)
        A('v_lshl_add_u32', v(vVa + t), t5, '6', t4)
    for r in range(64):
        A('v_mov_b32', v(vO + r), '0')
    vC = vP
    for r in range(16):
        A('v_mov_b32', v(vC + r), '0')
    A('v_mov_b32', v(vL), '0')
    A('v_mov_b32', v(vM), '0')
    sLo = 67
    A('s_mov_b32', s(sThr), '0xff800000')
    A('s_mov_b32', s(sLo), '0xff800000')
    A('s_mov_b32', s(sIt), '0')

    lg = Cnt(A)
    KBUF = [0, 32768]; VBUF = [16384, 49152]
    def kread(par, k):
        u, sidx = k >> 3, k & 7
        A('ds_read_b128', v(vF + 4 * (k % 8), 4), v(vKa + sidx), mods=f'offset:{KBUF[par] + u * 8192}')
        lg.issue(('K', k))
    def vslot(k):
        return (8 + k) % 12
    def vread(par, k):
        e, t = k >> 2, k & 3
        for h2 in range(2):
            A('ds_read_b64_tr_b16', v(vF + 4 * vslot(k) + 2 * h2, 2), v(vVa + t), mods=f'offset:{VBUF[par] + (16 * e + 8 * h2) * 256}')
            lg.issue(('V', k))

    A.waitcnt(vm=9 if opt.get('wotouch', False) else 8)
    A('s_barrier')
    A('s_cmp_eq_u32', s(sTeam), '0')
    A('s_cbranch_scc1', 'LF_S_nst')
    A('s_barrier')
    A.label('LF_S_nst')
    for k in range(4):
        kread(0, k)
    saved = list(lg.p)
    rare = []

    PVS = opt.get('pvs', 8)
    def tile_loop(team):
        A.label(f'LF_Sloop{team}')
        for par in range(2):
            kslot, vsl = 2 * par, 2 * par + 1
            mx = v(vt[0]); mx2 = v(vt[1])
            def max_items(u, first):
                it = []
                base = vS + 16 * u
                if first:
                    it.append(lambda: A('v_max3_f32', mx, v(base), v(base + 1), v(base + 2)))
                    rest = list(range(3, 16))
                else:
                    rest = list(range(0, 16))
                while len(rest) >= 2:
                    a, b = rest[0], rest[1]; rest = rest[2:]
                    it.append(lambda a=a, b=b: A('v_max3_f32', mx, mx, v(base + a), v(base + b)))
                if rest:
                    a = rest[0]
                    it.append(lambda a=a: A('v_max_f32', mx, mx, v(base + a)))
                return it
            m0items = max_items(0, True)
            dq = dma_parts(2 * (1 - par) + 1)
            kread(par, 4); kread(par, 5)
            for k in range(16):
                u, sidx = k >> 3, k & 7
                if k % 2 == 0:
                    lg.wait(('K', min(k + 1, 15)))
                if k == 12:
                    lg.wait(('K', 15))
                    A.waitcnt(vm=8)
                    A('s_barrier')
                    assert not dq
                    dq = dma_parts(kslot)
                acc = v(vS + 16 * u, 16)
                A('v_mfma_f32_32x32x16_bf16', acc, v(vF + 4 * (k % 8), 4), v(vQ0 + 4 * sidx, 4), v(vC, 16) if sidx == 0 else acc)
                if k + 6 < 16:
                    kread(par, k + 6)
                if k >= 12:
                    vread(par, k - 12)
                if k in (1, 3, 5, 7, 14):
                    dq.pop(0)()
                if k >= 11 and m0items:
                    m0items.pop(0)()
                    if m0items: m0items.pop(0)()
            for it in m0items:
                it()
            vread(par, 4); vread(par, 5); vread(par, 6)
            for it in max_items(1, False):
                it()
            A('v_mov_b32', mx2, mx)
            A('v_permlane32_swap_b32', mx, mx2)
            A('v_max_f32', mx, mx, mx2)
            A('v_cmp_lt_f32', 'vcc', s(sThr), mx)
            lr, lb = f'LF_rare{team}{par}', f'LF_back{team}{par}'
            A('s_cbranch_vccnz', lr)
            A.label(lb)
            rare.append((lr, lb))
            def p_items(e):
                it = []
                base = vS + 8 * e
                for r in range(8):
                    it.append(lambda r=r: A('v_exp_f32', v(base + r), v(base + r)))
                for r in range(8):
                    acc = vL if r % 2 == 0 else vM
                    it.append(lambda r=r, acc=acc: A('v_add_f32', v(acc), v(acc), v(base + r)))
                for i in range(4):
                    it.append(lambda i=i: A('v_cvt_pk_bf16_f32', v(base + i), v(base + 2 * i), v(base + 2 * i + 1)))
                return it
            for it in p_items(0):
                it()
            nxt = 7
            for k in range(16):
                e, t = k >> 2, k & 3
                if k == PVS:
                    lg.wait(('V', 15))
                    A.waitcnt(vm=8)
                    A('s_barrier')
                elif k % 2 == 0:
                    lg.wait(('V', k + 1))
                acc = v(vO + 16 * t, 16)
                A('v_mfma_f32_32x32x16_bf16', acc, v(vF + 4 * vslot(k), 4), v(vS + 8 * e, 4), acc)
                n_rd = 2 if k < 4 else 1
                for _ in range(n_rd):
                    if nxt < 16 and (nxt < 12 or nxt - 12 <= k):
                        while len(lg.p) > 13:
                            lg.wait(lg.p[1])
                        vread(par, nxt); nxt += 1
                if k in (1, 4, 6):
                    dq.pop(0)()
                if k >= 12:
                    kread(1 - par, k - 12)
                if e < 3:
                    items = p_items(e + 1)
                    for it in items[5 * t:5 * t + 5]: it()
            assert nxt == 16
            assert not dq
            assert lg.p == saved, (lg.p, saved)
        A('s_add_u32', s(sIt), s(sIt), '1')
        A('s_cmp_lt_u32', s(sIt), '4')
        A('s_cbranch_scc1', f'LF_Sloop{team}')
    tile_loop(0)
    A('s_cmp_lg_u32', s(sTeam), '0')
    A('s_cbranch_scc1', 'LF_S_nst2')
    A('s_barrier')
    A.label('LF_S_nst2')
    l2 = v(vt[0]); inv = v(vt[1])
    A('v_add_f32', v(vL), v(vL), v(vM))
    A('v_mov_b32', l2, v(vL))
    A('v_permlane32_swap_b32', v(vL), l2)
    A('v_add_f32', l2, l2, v(vL))
    A('v_rcp_f32', inv, l2)
    for t in range(4):
        for r in range(16):
            A('v_mul_f32', v(vO + 16 * t + r), v(vO + 16 * t + r), inv)
        for a in range(2):
            for i, r0 in enumerate((4 * a, 4 * a + 2, 8 + 4 * a, 8 + 4 * a + 2)):
                A('v_cvt_pk_bf16_f32', v(vQ0 + 8 * t + 4 * a + i), v(vO + 16 * t + r0), v(vO + 16 * t + r0 + 1))
    A.waitcnt(lgkm=0)
    A('s_cmp_lg_u32', s(sNext), '0')
    A('s_cbranch_scc1', 'LF_S_nowait')
    A.waitcnt(vm=0)
    A.label('LF_S_nowait')
    ret(A)
    for lr, lb in rare:
        mx = v(vt[0]); delta = v(vt[2]); alpha = v(vt[3])
        A.label(lr)
        A('v_max_f32', delta, s(sLo), mx)
        A('v_max_f32', alpha, '0', delta)
        A('v_sub_f32', alpha, '0', alpha)
        A('v_exp_f32', alpha, alpha)
        for r in range(32):
            A('v_sub_f32', v(vS + r), v(vS + r), delta)
        for r in range(16):
            A('v_sub_f32', v(vC + r), v(vC + r), delta)
        A('v_mul_f32', v(vL), v(vL), alpha)
        A('v_mul_f32', v(vM), v(vM), alpha)
        for r in range(64):
            A('v_mul_f32', v(vO + r), v(vO + r), alpha)
        A('s_mov_b32', s(sThr), f32(8.0))
        A('s_mov_b32', s(sLo), '0')
        A('s_branch', lb)


def phase_o(A, opt):
    L = v(vLane)
    vOd, vOe, vOa, vOx, vOb, vOw = 4, 8, 9, 13, 14, 15
    t0, t1, t2, t3, t4, t5 = [v(x) for x in range(20, 26)]
    vAcc, vFA, vFB = vW, vW + 80, vW + 120
    OT = 98304
    RING = 10240
    sM0R = sM0O
    A.label('LF_O')
    A('v_lshrrev_b32', t0, '3', L)
    A('v_and_b32', t1, '7', L)
    A('v_bfe_u32', t2, L, '4', '2')
    A('v_lshlrev_b32', t2, '1', t2)
    A('v_xor_b32', t1, t1, t2)
    A('v_mul_u32_u24', t0, '1152', t0)
    A('v_lshl_add_u32', v(vOd), t1, '4', t0)
    for jj in range(1, 4):
        A('v_add_u32', v(vOd + jj), str(jj * (8 * 1152 - 1024)), v(vOd))
    A('v_lshrrev_b32', t0, '1', L)
    A('v_and_b32', t1, '1', L)
    A('v_mul_u32_u24', t0, '1152', t0)
    A('v_lshl_add_u32', t0, t1, '4', t0)
    A('s_mul_i32', s(sTmp), s(sWave), '96')
    A('s_sub_u32', s(sTmp), '1024', s(sTmp))
    A('v_add_u32', v(vOe), s(sTmp), t0)
    A('s_lshl_b32', s(sWoBase), s(sG), '1')
    A('s_add_u32', s(sWoBase), s(sWoBase), s(sR))
    A('s_mul_i32', s(sWoBase), s(sWoBase), str(512 * 1152))
    A('s_lshl_b32', s(sTmp), s(sWave), '7')
    A('s_add_u32', s(sWoff), s(sWoBase), s(sTmp))
    A('s_mov_b32', s(sCk), '0')
    A('s_mul_i32', s(sM0R), s(sWave), str(RING))
    def wo_parts(st, team):
        parts = []
        for jj in range(4):
            def f(jj=jj):
                if jj == 0:
                    A('s_add_u32', 'm0', s(sM0R), str(st * 5120))
                A('buffer_load_dwordx4', v(vOd + jj), s(sWo, 4), s(sWoff), mods=f'offen offset:{jj*1024} lds')
                if jj == 3:
                    if team == 0:
                        A('s_add_u32', 'm0', s(sM0R), str(st * 5120 + 4096))
                        A('buffer_load_dwordx4', v(vOe), s(sWo, 4), s(sWoff), mods='offen lds')
                    A('s_add_u32', s(sCk), s(sCk), '1')
                    A('s_add_u32', s(sWoff), s(sWoff), str(32 * 1152))
                    A('s_cmp_eq_u32', s(sCk), '32')
                    A('s_cselect_b32', s(sWoff), OOB, s(sWoff))
            parts.append(f)
        return parts
    A('s_barrier')
    A('s_cmp_lg_u32', s(sTeam), '0')
    A('s_cbranch_scc1', 'LF_O_p1')
    for d in wo_parts(0, 0) + wo_parts(1, 0): d()
    A('s_branch', 'LF_O_p2')
    A.label('LF_O_p1')
    for d in wo_parts(0, 1) + wo_parts(1, 1): d()
    A.label('LF_O_p2')
    A('v_bfe_u32', t0, L, '4', '1')
    A('v_and_b32', t2, '15', L)
    A('v_lshrrev_b32', t1, '5', L)
    A('v_lshlrev_b32', t2, '4', t2)
    A('v_lshl_add_u32', t2, t0, '10', t2)
    A('v_lshl_add_u32', t2, t1, '8', t2)
    A('s_lshr_b32', s(sTmp), s(sWave), '1')
    A('s_lshl_b32', s(sTmp), s(sTmp), '14')
    A('s_and_b32', s(sTmp2), s(sWave), '1')
    A('s_lshl_b32', s(sTmp2), s(sTmp2), '11')
    A('s_add_u32', s(sTmp), s(sTmp), s(sTmp2))
    A('s_add_u32', s(sTmp), s(sTmp), str(OT))
    A('v_add_u32', v(vOw), s(sTmp), t2)
    def owrite(src):
        for t in range(4):
            for a in range(2):
                A('ds_write_b128', v(vOw), v(src + 8 * t + 4 * a, 4), mods=f'offset:{t * 4096 + a * 512}')
    owrite(vQ1)
    A('v_lshlrev_b32', t0, '4', L)
    A('v_add_u32', v(vOb), str(OT), t0)
    A('v_lshrrev_b32', t0, '2', L)
    A('v_bfe_u32', t1, L, '3', '2')
    A('v_and_b32', t2, '3', L)
    A('v_lshlrev_b32', t3, '7', t0)
    A('v_lshl_add_u32', t3, t2, '3', t3)
    A('v_add_u32', t3, s(sM0R), t3)
    for tn in range(4):
        A('v_xor_b32', t4, str(tn), t1)
        A('v_lshl_add_u32', v(vOa + tn), t4, '5', t3)
    A('v_lshlrev_b32', t3, '5', t0)
    A('v_lshl_add_u32', t3, t2, '3', t3)
    A('v_add_u32', v(vOx), s(sM0R), t3)
    for r in range(80):
        A('v_mov_b32', v(vAcc + r), '0')
    A.waitcnt(lgkm=0)
    A('s_barrier')

    def body(team):
        nt = 5 if team == 0 else 4
        G = nt
        lg = Cnt(A)
        def aread(st, tn):
            for e in range(2):
                if tn < 4:
                    A('ds_read_b64_tr_b16', v(vFA + 20 * st + 4 * tn + 2 * e, 2), v(vOa + tn), mods=f'offset:{st * 5120 + e * 2048}')
                else:
                    A('ds_read_b64_tr_b16', v(vFA + 20 * st + 16 + 2 * e, 2), v(vOx), mods=f'offset:{st * 5120 + 4096 + e * 512}')
                lg.issue(('A', st, tn))
        def bread(st, qt, off):
            A('ds_read_b128', v(vFB + 16 * st + 4 * qt, 4), v(vOb), mods=f'offset:{off + qt * 1024}')
            lg.issue(('B', st, qt))
        A.waitcnt(vm=G)
        for tn in range(nt): aread(0, tn)
        for qt in range(4): bread(0, qt, 0)
        A.waitcnt(lgkm=0); lg.p = []
        for d in wo_parts(0, team): d()
        A('s_mov_b32', s(sIt), '0')
        A.label(f'LF_Oloop{team}')
        for st in range(2):
            A.waitcnt(vm=G)
            rd = [(lambda tn=tn: aread(1 - st, tn)) for tn in range(nt)] + [(lambda qt=qt: bread(1 - st, qt, 4096 * (st + 1))) for qt in range(4)]
            dma = wo_parts(1 - st, team)
            n = 0
            for tn in range(nt):
                for qt in range(4):
                    acc = v(vAcc + (tn * 4 + qt) * 4, 4)
                    A('v_mfma_f32_16x16x32_bf16', acc, v(vFA + 20 * st + 4 * tn, 4), v(vFB + 16 * st + 4 * qt, 4), acc)
                    n += 1
                    if rd:
                        rd.pop(0)()
                    elif dma and n >= nt + 6 and (n - nt) % 2 == 0:
                        if len(dma) == 4:
                            lg.wait(('A', 1 - st, nt - 1))
                        dma.pop(0)()
            for d in dma: d()
            A.waitcnt(lgkm=0); lg.p = []
        A('v_add_u32', v(vOb), '8192', v(vOb))
        A('s_add_u32', s(sIt), s(sIt), '1')
        A('s_cmp_lg_u32', s(sIt), '8')
        A('s_cbranch_scc1', f'LF_O_nomid{team}')
        A('s_barrier')
        owrite(vQ0)
        A('v_subrev_u32', v(vOb), '65536', v(vOb))
        A.waitcnt(lgkm=0)
        A('s_barrier')
        for qt in range(4): bread(0, qt, 0)
        A.waitcnt(lgkm=0); lg.p = []
        A.label(f'LF_O_nomid{team}')
        A('s_cmp_lt_u32', s(sIt), '16')
        A('s_cbranch_scc1', f'LF_Oloop{team}')
        A.waitcnt(vm=0)
        A('v_lshlrev_b32', t0, '4', L)
        A('s_lshl_b32', s(sTmp), s(sWave), '13')
        A('s_add_u32', s(sTmp), s(sTmp), s(sPoff))
        for tn in range(nt):
            for qp in range(2):
                d = vFA + 4 * (2 * tn + qp)
                for k in range(2):
                    a = vAcc + (tn * 4 + 2 * qp + k) * 4
                    A('v_cvt_pk_bf16_f32', v(d + 2 * k), v(a), v(a + 1))
                    A('v_cvt_pk_bf16_f32', v(d + 2 * k + 1), v(a + 2), v(a + 3))
                if tn == 2 and qp == 0:
                    A('s_add_u32', s(sTmp), s(sTmp), '4096')
                if tn == 4 and qp == 0:
                    A('s_lshl_b32', s(sTmp), s(sWave), '11')
                    A('s_add_u32', s(sTmp), s(sTmp), s(sPoff))
                    A('s_add_u32', s(sTmp), s(sTmp), '65536')
                A('buffer_store_dwordx4', v(d, 4), t0, s(sWS, 4), s(sTmp), mods=f'offen offset:{((tn % 2) * 2 + qp) * 1024} {opt.get("pflags", "")}')
    A('s_cmp_lg_u32', s(sTeam), '0')
    A('s_cbranch_scc1', 'LF_O_b1')
    body(0)
    A('s_branch', 'LF_O_ns')
    A.label('LF_O_b1')
    body(1)
    A.label('LF_O_ns')
    ret(A)


def reduce_kernel(A, opt):
    kn = 'reduce_kernel'
    A.raw('.globl %s\n.p2align 8\n.type %s,@function' % (kn, kn))
    A.label(kn)
    A('s_cmp_ge_u32', 's2', str(64 * 18))
    A('s_cbranch_scc1', 'LR_done')
    A('s_load_dwordx2', s(16, 2), s(0, 2), '80')
    A('s_load_dwordx2', s(18, 2), s(0, 2), '96')
    A('s_mul_i32', s(20), 's2', '3641')
    A('s_lshr_b32', s(20), s(20), '16')
    A('s_mul_i32', s(21), s(20), '18')
    A('s_sub_u32', s(21), 's2', s(21))
    A('v_lshrrev_b32', v(1), '6', v(0))
    A('v_readfirstlane_b32', s(22), v(1))
    A('s_lshl_b32', s(23), s(21), '2')
    A('s_add_u32', s(23), s(23), s(22))
    A('s_lshr_b32', s(24), s(23), '1')
    A('s_and_b32', s(25), s(23), '1')
    A('v_and_b32', v(1), '63', v(0))
    A('v_lshlrev_b32', v(2), '4', v(1))
    A.waitcnt(lgkm=0)
    srd(A, 4, 16, OUT_BYTES)
    srd(A, 8, 18, WS_BYTES)
    A('s_mul_i32', s(26), s(20), str(8 * PART))
    A('s_lshl_b32', s(27), s(23), '10')
    A('s_add_u32', s(26), s(26), s(27))
    A('s_and_b32', s(28), s(20), '1')
    for g in range(4):
        A('s_add_u32', s(30), s(26), str(g * 2 * PART))
        A('buffer_load_dwordx4', v(8 + 4 * g, 4), v(2), s(8, 4), s(30), mods='offen ' + opt.get('rflags', ''))
    A('s_and_b32', s(31), s(20), '31')
    A('s_lshr_b32', s(32), s(20), '5')
    A('s_lshl_b32', s(31), s(31), '6')
    A('s_lshl_b32', s(33), s(25), '5')
    A('s_add_u32', s(31), s(31), s(33))
    A('s_mul_i32', s(31), s(31), '2304')
    A('s_mul_i32', s(32), s(32), '1152')
    A('s_add_u32', s(31), s(31), s(32))
    A('s_lshl_b32', s(33), s(24), '5')
    A('s_add_u32', s(31), s(31), s(33))
    A('v_and_b32', v(3), '15', v(1))
    A('v_mul_u32_u24', v(3), '2304', v(3))
    A('v_lshrrev_b32', v(4), '4', v(1))
    A('v_lshl_add_u32', v(3), v(4), '3', v(3))
    for k in range(4):
        A.waitcnt(vm=3 - k)
        for d in range(4):
            src = v(8 + 4 * k + d)
            if k == 0:
                A('v_lshlrev_b32', v(32 + 2 * d), '16', src)
                A('v_and_b32', v(33 + 2 * d), '0xffff0000', src)
            else:
                A('v_lshlrev_b32', v(40), '16', src)
                A('v_and_b32', v(41), '0xffff0000', src)
                A('v_add_f32', v(32 + 2 * d), v(32 + 2 * d), v(40))
                A('v_add_f32', v(33 + 2 * d), v(33 + 2 * d), v(41))
    for d in range(4):
        A('v_cvt_pk_bf16_f32', v(44 + d), v(32 + 2 * d), v(33 + 2 * d))
    A('buffer_store_dwordx2', v(44, 2), v(3), s(4, 4), s(31), mods='offen ' + opt.get('oflags', ''))
    A('s_add_u32', s(31), s(31), str(16 * 2304))
    A('buffer_store_dwordx2', v(46, 2), v(3), s(4, 4), s(31), mods='offen ' + opt.get('oflags', ''))
    A.label('LR_done')
    A('s_endpgm')
    return kn


def kd(name, vgpr, sgpr):
    return f'''.amdhsa_kernel {name}
  .amdhsa_next_free_vgpr {vgpr}
  .amdhsa_next_free_sgpr {sgpr}
  .amdhsa_accum_offset {vgpr}
  .amdhsa_group_segment_fixed_size 0
  .amdhsa_kernarg_size 104
  .amdhsa_user_sgpr_count 2
  .amdhsa_user_sgpr_kernarg_segment_ptr 1
  .amdhsa_system_sgpr_workgroup_id_x 1
.end_amdhsa_kernel
'''

def generate(opt):
    A = Asm()
    ka = fused_kernel(A, opt)
    kb = reduce_kernel(A, opt)
    errs = A.check_branches()
    for e in errs:
        print('HAZARD:', e, file=sys.stderr)
    assert not errs
    hdr = [l for l in HDR if l.startswith(';') and '@launch' not in l]
    out = '\n'.join(hdr) + '\n'
    out += f'; @launch kernel={ka} grid=(256,1,1) block=(512,1,1) lds=163840\n'
    out += f'; @launch kernel={kb} grid=(1152,1,1) block=(256,1,1) lds=0\n'
    out += '.amdgcn_target "amdgcn-amd-amdhsa--gfx950"\n.text\n'
    out += A.text().replace('CODEBYTES', 'LCODE_END-fused_kernel')
    out += 'LCODE_END:\n'
    out += '.section .rodata,"a"\n.p2align 6\n'
    out += kd(ka, 256, 102)
    out += '.p2align 6\n'
    out += kd(kb, 48, 40)
    return out

if __name__ == '__main__':
    opt = {}
    for a in sys.argv[2:]:
        k, val = a.split('=')
        opt[k] = eval(val)
    txt = generate(opt)
    open(sys.argv[1], 'w').write(txt)
    print('wrote', sys.argv[1], len(txt))
```

```python
import sys, math, struct
sys.path.insert(0, 'gen')
from asmlib import *

NAME = 'concat_heads__gqa_block_cached__gqa_block_cached__near_ridge'
HDR = open('cdna_kernels/' + NAME + '.s.ref').read().split('\n')

X_BYTES = 32 * 64 * 576 * 2
KV_BYTES = 32 * 16 * 512 * 128 * 2
W_BYTES = 576 * 4096 * 2
OUT_BYTES = 32 * 64 * 1152 * 2
PART = 64 * 576 * 2
WS_BYTES = 64 * 8 * PART
OOB = '0x7f000000'

def f32(x):
    return hex(int.from_bytes(struct.pack('<f', x), 'little'))

class Cnt:
    def __init__(self, A, maxn=15):
        self.A = A; self.p = []; self.maxn = maxn
    def issue(self, tag):
        self.p.append(tag)
        assert len(self.p) <= self.maxn, len(self.p)
    def wait(self, tag):
        idx = None
        for k, t in enumerate(self.p):
            if t == tag:
                idx = k
        if idx is None:
            return
        self.A.waitcnt(lgkm=len(self.p) - idx - 1)
        self.p = self.p[idx + 1:]

def srd(A, d, plo, nbytes):
    A('s_mov_b32', s(d), s(plo))
    A('s_and_b32', s(d + 1), s(plo + 1), '0xffff')
    A('s_mov_b32', s(d + 2), hex(nbytes))
    A('s_mov_b32', s(d + 3), '0x00020000')

sX, sK, sV, sWq, sWo, sWS = 4, 8, 12, 16, 20, 24
sWave, sTeam, sTmp, sTmp2, sType, sC, sThr = 28, 29, 30, 31, 32, 33, 34
sR, sIt, sT, sKVoff, sKVbase, sM0KV = 35, 36, 37, 38, 39, 40
sWbase, sXbase, sWoff, sXoff, sCk, sXk = 41, 42, 43, 44, 45, 46
sG, sB, sP, sW3 = 47, 48, 49, 50
sM0W, sM0X, sWoBase, sPoff, sFlagZ, sFlagS = 51, 52, 53, 54, 55, 56
sRet = 58
sM0O = 60
sLd = 70
sStamp = 72
vTid, vLane = 0, 1
vA0 = 4
vQ0, vQ1 = 32, 64
vKd, vVd = 27, 31
sKoff, sVoff, sKn, sVn, sPre, sNext, sJump = 38, 57, 37, 63, 64, 65, 66
vW = 96


def fused_kernel(A, opt):
    kn = 'fused_kernel'
    A.raw('.globl %s\n.p2align 8\n.type %s,@function' % (kn, kn))
    A.label(kn)
    L = v(vLane)
    nst = [0]
    def stamp():
        if opt.get('stamp'):
            A('s_memrealtime', s(sStamp + 2 * nst[0], 2))
            A('s_memtime', s(70, 2))
            A.waitcnt(lgkm=0)
            A('s_mov_b32', s(sStamp + 2 * nst[0] + 1), s(70))
            nst[0] += 1

    A('s_cmp_ge_u32', 's2', '256')
    A('s_cbranch_scc1', 'LF_done')
    if opt.get('codewarm', False):
        A('s_getpc_b64', s(96, 2))
        A('s_and_b32', s(96), s(96), '0xffffff00')
        A('s_and_b32', s(97), s(97), '0xffff')
        A('s_mov_b32', s(98), 'CODEBYTES')
        A('s_mov_b32', s(99), '0x00020000')
        A('v_lshlrev_b32', v(2), '7', v(vTid))
        A('buffer_load_dword', v(3), v(2), s(96, 4), '0', mods='offen ' + opt.get('cflags', ''))
    A('s_load_dwordx8', s(72, 8), s(0, 2), '0')
    A('s_load_dwordx2', s(80, 2), s(0, 2), '32')
    A('s_load_dwordx8', s(84, 8), s(0, 2), '40')
    A('s_load_dwordx2', s(92, 2), s(0, 2), '72')
    A('s_load_dwordx2', s(94, 2), s(0, 2), '96')
    A('s_and_b32', s(sTmp), 's2', '7')
    A('s_lshr_b32', s(sP), s(sTmp), '2')
    A('s_and_b32', s(sG), s(sTmp), '3')
    A('s_lshr_b32', s(sB), 's2', '3')
    A('s_add_u32', s(sType), s(sB), s(sG))
    A('s_and_b32', s(sType), s(sType), '1')
    if opt.get('typemode') == 'p': A('s_mov_b32', s(sType), s(sP))
    if opt.get('typemode') == 'g': A('s_and_b32', s(sType), s(sG), '1')
    A('v_and_b32', L, '63', v(vTid))
    A('v_lshrrev_b32', v(2), '6', v(vTid))
    A('v_readfirstlane_b32', s(sWave), v(2))
    A('s_lshr_b32', s(sTeam), s(sWave), '2')
    A('s_and_b32', s(sW3), s(sWave), '3')
    A('s_mov_b32', s(sC), f32((128 ** -0.5) * math.log2(math.e)))
    A('s_mov_b32', s(sThr), f32(8.0 / ((128 ** -0.5) * math.log2(math.e))))
    A.waitcnt(lgkm=0)
    A('s_cmp_eq_u32', s(sP), '0')
    for k in range(4):
        A('s_cselect_b64', s(72 + 2 * k, 2), s(72 + 2 * k, 2), s(84 + 2 * k, 2))
    A('s_cselect_b64', s(80, 2), s(80, 2), s(92, 2))
    srd(A, sX, 72, X_BYTES)
    srd(A, sK, 74, KV_BYTES)
    srd(A, sV, 76, KV_BYTES)
    srd(A, sWq, 78, W_BYTES)
    srd(A, sWo, 80, W_BYTES)
    srd(A, sWS, 94, (0x10000000 if opt.get('stamp') else WS_BYTES))
    A('s_lshl_b32', s(sKVbase), s(sB), '4')
    A('s_lshl_b32', s(sTmp), s(sG), '2')
    A('s_add_u32', s(sKVbase), s(sKVbase), s(sTmp))
    A('s_add_u32', s(sKVbase), s(sKVbase), s(sTeam))
    A('s_lshl_b32', s(sKVbase), s(sKVbase), '17')
    A('s_lshl_b32', s(sTmp), s(sW3), '12')
    A('s_add_u32', s(sKVbase), s(sKVbase), s(sTmp))
    A('s_lshl_b32', s(sM0KV), s(sTeam), '16')
    A('s_add_u32', s(sM0KV), s(sM0KV), s(sTmp))
    A('s_lshl_b32', s(sM0W), s(sWave), '12')
    A('s_lshl_b32', s(sM0X), s(sWave), '10')
    A('s_lshl_b32', s(sXbase), s(sB), '6')
    A('s_lshl_b32', s(sTmp), s(sWave), '3')
    A('s_add_u32', s(sXbase), s(sXbase), s(sTmp))
    A('s_mulk_i32', s(sXbase), '1152')
    A('s_lshl_b32', s(sPoff), s(sP), '5')
    A('s_add_u32', s(sPoff), s(sPoff), s(sB))
    A('s_lshl_b32', s(sPoff), s(sPoff), '2')
    A('s_add_u32', s(sPoff), s(sPoff), s(sG))
    A('s_mul_i32', s(sPoff), s(sPoff), str(2 * PART))
    A('v_lshrrev_b32', v(4), '4', L)
    A('v_and_b32', v(5), '15', L)
    for jj in range(4):
        A('v_add_u32', v(6), str(4 * jj), v(4))
        A('v_xor_b32', v(6), v(6), v(5))
        A('v_lshlrev_b32', v(6), '4', v(6))
        A('v_lshl_add_u32', v(vKd + jj), v(4), '8', v(6))
    A('v_lshlrev_b32', v(6), '2', v(4))
    A('v_xor_b32', v(6), v(6), v(5))
    A('v_lshlrev_b32', v(6), '4', v(6))
    A('v_lshl_add_u32', v(vVd), v(4), '8', v(6))
    if opt.get('q0touch', False):
        A('s_lshr_b32', s(sTmp2), s(sB), '1')
        A('s_lshl_b32', s(sTmp2), s(sTmp2), '3')
        A('s_add_u32', s(sTmp2), s(sTmp2), s(sWave))
        A('s_mul_i32', s(sTmp2), s(sTmp2), '36')
        A('v_min_u32', v(4), '35', L)
        A('v_add_u32', v(4), s(sTmp2), v(4))
        A('v_and_b32', v(5), '7', v(4))
        A('v_lshrrev_b32', v(4), '3', v(4))
        A('v_lshlrev_b32', v(4), '13', v(4))
        A('v_lshl_add_u32', v(4), v(5), '7', v(4))
        A('s_lshl_b32', s(sTmp), s(sG), '1')
        A('s_add_u32', s(sTmp), s(sTmp), s(sType))
        A('s_lshl_b32', s(sTmp), s(sTmp), '10')
        A('buffer_load_dword', v(3), v(4), s(sWq, 4), s(sTmp), mods='offen nt')
        A('v_lshlrev_b32', v(4), '7', L)
        A('buffer_load_dword', v(3), v(4), s(sX, 4), s(sXbase), mods='offen nt')
        A('buffer_load_dword', v(3), v(4), s(sX, 4), s(sXbase), mods='offen offset:1024 nt')
    if opt.get('tlbwarm', False):
        A('s_cmp_lg_u32', s(sWave), '0')
        A('s_cbranch_scc1', 'LF_ntw')
        A('v_lshlrev_b32', v(4), '13', L)
        A('buffer_load_dword', v(3), v(4), s(sK, 4), s(sKVbase), mods='offen nt')
        A('buffer_load_dword', v(3), v(4), s(sV, 4), s(sKVbase), mods='offen nt')
        A.label('LF_ntw')
    stamp()

    def kvinit(r):
        A('s_add_u32', s(sKoff), s(sKVbase), str(r << 18))
        if opt.get('kv_oob'): A('s_mov_b32', s(sKoff), '0x70000000')
        A('s_mov_b32', s(sVoff), s(sKoff))
        A('s_mov_b32', s(sKn), '0')
        A('s_mov_b32', s(sVn), '0')
    def call(lbl):
        A('s_call_b64', s(sRet, 2), lbl)
        A('s_nop', '7'); A('s_nop', '7')
    def setr(r):
        A('s_mov_b32', s(sR), str(r))
    def mov32(dst, src):
        for i in range(32):
            A('v_mov_b32', v(dst + i), v(src + i))
    def swap32():
        for i in range(32):
            A('v_swap_b32', v(vQ0 + i), v(vQ1 + i))

    setr(1)
    rot = opt.get('rot', 1)
    if rot == 0:
        A('s_mov_b32', s(sJump), '0')
    elif rot == 1:
        A('s_and_b32', s(sJump), s(sB), '7')
    elif rot == 2:
        A('s_lshl_b32', s(sJump), s(sTeam), '2')
        A('s_add_u32', s(sJump), s(sJump), s(sB))
        A('s_add_u32', s(sJump), s(sJump), s(sG))
        A('s_and_b32', s(sJump), s(sJump), '7')
    A('s_lshl_b32', s(sKoff), s(sJump), '14')
    A('s_add_u32', s(sKoff), s(sKoff), s(sKVbase))
    A('s_mov_b32', s(sVoff), s(sKoff))
    A('s_mov_b32', s(sKn), '0')
    A('s_mov_b32', s(sVn), '0')
    A('s_mov_b32', s(sPre), '1'); A('s_mov_b32', s(sNext), '1')
    call('LF_Q'); stamp()
    setr(0)
    call('LF_S'); stamp()
    swap32()
    setr(1)
    A('s_mov_b32', s(sPre), '3'); A('s_mov_b32', s(sNext), '0')
    call('LF_S'); stamp()
    setr(0)
    call('LF_O'); stamp()
    A.label('LF_end')
    if opt.get('stamp'):
        A('s_lshl_b32', s(sTmp), 's2', '3')
        A('s_add_u32', s(sTmp), s(sTmp), s(sWave))
        A('s_lshl_b32', s(sTmp), s(sTmp), '6')
        A('s_add_u32', s(sTmp), s(sTmp), hex(200 << 20))
        A('v_mov_b32', v(6), '0')
        A('s_mov_b64', 'exec', '1')
        for i in range(7):
            A('v_mov_b32', v(4), s(sStamp + 2 * i))
            A('v_mov_b32', v(5), s(sStamp + 2 * i + 1))
            A('buffer_store_dwordx2', v(4, 2), v(6), s(sWS, 4), s(sTmp), mods=f'offen offset:{8*i}')
            A.waitcnt(vm=0)
    A.label('LF_done')
    A('s_endpgm')

    phase_q(A, opt)
    phase_s(A, opt)
    phase_o(A, opt)
    return kn


def kv_parts(A, opt, slot):
    kvflags = opt.get('kvflags', 'nt')
    parts = []
    isk = slot % 2 == 0
    so, sn = (sKoff, sKn) if isk else (sVoff, sVn)
    for jj in range(4):
        def f(jj=jj):
            if jj == 0:
                A('s_add_u32', 'm0', s(sM0KV), str(slot * 16384))
            if isk:
                A('buffer_load_dwordx4', v(vKd + jj), s(sK, 4), s(so), mods=f'offen offset:{jj*1024} {kvflags} lds')
            else:
                A('buffer_load_dwordx4', v(vVd), s(sV, 4), s(so), mods=f'offen offset:{jj*1024} {kvflags} lds')
            if jj == 3:
                A('s_add_u32', s(sn), s(sn), '1')
                A('s_add_u32', s(sTmp), s(sn), s(sJump))
                A('s_and_b32', s(sTmp), s(sTmp), '7')
                A('s_lshl_b32', s(sTmp), s(sTmp), '14')
                A('s_lshr_b32', s(sTmp2), s(sn), '3')
                A('s_lshl_b32', s(sTmp2), s(sTmp2), '18')
                A('s_add_u32', s(sTmp), s(sTmp), s(sTmp2))
                A('s_add_u32', s(so), s(sTmp), s(sKVbase))
                A('s_cmp_ge_u32', s(sn), '16')
                A('s_cselect_b32', s(so), OOB, s(so))
        parts.append(f)
    return parts


def ret(A):
    A('s_nop', '7'); A('s_nop', '7')
    A('s_setpc_b64', s(sRet, 2))


def phase_q(A, opt):
    L = v(vLane)
    vWd, vWa, vXd, vXa = 4, 8, 12, 13
    t0, t1, t2, t3, t4, t5 = [v(x) for x in range(21, 27)]
    vAcc, vFA, vFB = vW, vW + 64, vW + 96
    WST = [98304, 16384, 131072]
    XSL = [49152, 57344, 81920]
    A.label('LF_Q')
    for jj in range(4):
        A('v_xor_b32', t0, str(4 * jj), L)
        A('v_lshlrev_b32', t0, '4', t0)
        A('v_add_u32', v(vWd + jj), str(jj * (8192 - 1024)), t0)
    A('s_and_b32', s(sTmp), s(sWave), '1')
    A('s_lshl_b32', s(sTmp), s(sTmp), '2')
    A('v_lshrrev_b32', t0, '4', L)
    A('v_add_u32', t0, s(sTmp), t0)
    A('v_and_b32', t1, '7', L)
    A('v_xor_b32', t0, t0, t1)
    A('v_lshlrev_b32', t0, '4', t0)
    A('v_lshrrev_b32', t1, '3', L)
    A('v_mul_u32_u24', t1, '1152', t1)
    A('v_add_u32', v(vXd), t0, t1)
    A('s_lshl_b32', s(sWbase), s(sG), '1')
    A('s_add_u32', s(sWbase), s(sWbase), s(sR))
    A('s_lshl_b32', s(sWbase), s(sWbase), '10')
    A('s_lshl_b32', s(sTmp), s(sWave), '15')
    A('s_add_u32', s(sWbase), s(sWbase), s(sTmp))
    A('s_mul_i32', s(sTmp), s(sB), '57')
    A('s_lshr_b32', s(sTmp), s(sTmp), '9')
    A('s_mul_i32', s(sTmp), s(sTmp), '9')
    A('s_sub_u32', s(sXk), s(sB), s(sTmp))
    A('s_lshl_b32', s(sCk), s(sXk), '1')
    A('s_mov_b32', s(sFlagS), '0')

    def w_parts(st):
        parts = []
        for jj in range(4):
            def f(jj=jj):
                if jj == 0:
                    A('s_lshl_b32', s(sWoff), s(sCk), '18')
                    A('s_add_u32', s(sWoff), s(sWoff), s(sWbase))
                    A('s_add_u32', s(sCk), s(sCk), '1')
                    A('s_cmp_eq_u32', s(sCk), '18')
                    A('s_cselect_b32', s(sCk), '0', s(sCk))
                    A('s_add_u32', s(sFlagS), s(sFlagS), '1')
                    A('s_cmp_eq_u32', s(sFlagS), '18')
                    A('s_cselect_b32', s(sTmp), '1024', '0')
                    A('s_sub_u32', s(sWbase), s(sWbase), s(sTmp))
                if jj == 0 or not opt.get('m0once', True):
                    A('s_add_u32', 'm0', s(sM0W), str(WST[st]))
                A('buffer_load_dwordx4', v(vWd + jj), s(sWq, 4), s(sWoff), mods=f'offen offset:{jj*1024} {opt.get("wqflags", "")} lds')
            parts.append(f)
        return parts
    def x_part(sl):
        def f():
            A('s_lshl_b32', s(sXoff), s(sXk), '7')
            A('s_add_u32', s(sXoff), s(sXoff), s(sXbase))
            A('s_add_u32', s(sXk), s(sXk), '1')
            A('s_cmp_eq_u32', s(sXk), '9')
            A('s_cselect_b32', s(sXk), '0', s(sXk))
            A('s_add_u32', 'm0', s(sM0X), str(XSL[sl]))
            A('buffer_load_dwordx4', v(vXd), s(sX, 4), s(sXoff), mods='offen ' + opt.get('xflags', '') + ' lds')
        return [f]
    A('s_barrier')
    for d in x_part(0) + w_parts(0):
        d()
    A('v_bfe_u32', t0, L, '2', '2')
    A('v_lshrrev_b32', t1, '5', L)
    A('v_and_b32', t2, '1', L)
    A('v_bfe_u32', t3, L, '1', '1')
    A('v_lshl_add_u32', t2, t2, '1', t3)
    A('v_bfe_u32', t3, L, '4', '1')
    A('v_lshl_add_u32', t4, t1, '3', t0)
    A('v_lshlrev_b32', t4, '10', t4)
    A('v_lshl_add_u32', t4, t3, '5', t4)
    A('v_lshl_add_u32', t4, t2, '3', t4)
    A('s_lshr_b32', s(sTmp), s(sWave), '1')
    A('s_lshl_b32', s(sTmp), s(sTmp), '8')
    A('v_add_u32', t4, s(sTmp), t4)
    for t in range(4):
        A('v_xor_b32', t5, str(t), t0)
        A('v_lshl_add_u32', v(vWa + t), t5, '6', t4)
    vWa2 = 17
    for t in range(4):
        A('v_add_u32', v(vWa2 + t), '0x18000', v(vWa + t))
    A('v_and_b32', t0, '31', L)
    A('s_and_b32', s(sTmp), s(sWave), '1')
    A('s_lshl_b32', s(sTmp), s(sTmp), '5')
    A('v_add_u32', t0, s(sTmp), t0)
    A('v_bfe_u32', t2, L, '1', '3')
    A('v_xor_b32', t2, t2, t1)
    for s4 in range(4):
        A('v_xor_b32', t3, str(2 * s4), t2)
        A('v_lshlrev_b32', t3, '4', t3)
        A('v_lshl_add_u32', v(vXa + s4), t0, '7', t3)
        A('v_add_u32', v(vXa + s4), '49152', v(vXa + s4))
    for r in range(64):
        A('v_mov_b32', v(vAcc + r), '0')

    lg = Cnt(A)
    def reads(kk, part):
        c, sidx = (kk >> 1) % 3, kk & 1
        X, s4 = (kk >> 2) % 3, kk & 3
        par = kk & 1
        base = WST[c]
        if part == 'B':
            A('ds_read_b128', v(vFB + 4 * par, 4), v(vXa + s4), mods=f'offset:{XSL[X] - 49152}')
            lg.issue(('B', par))
        else:
            t = part
            for e in range(2):
                off = base + (16 * sidx + 4 * e) * 1024
                if base >= 98304:
                    A('ds_read_b64_tr_b16', v(vFA + 16 * par + 4 * t + 2 * e, 2), v(vWa2 + t), mods=f'offset:{off - 98304}')
                else:
                    A('ds_read_b64_tr_b16', v(vFA + 16 * par + 4 * t + 2 * e, 2), v(vWa + t), mods=f'offset:{off}')
                lg.issue(('A', par, t))
    def kstep(kk, nxt, sync, dma):
        par = kk & 1
        if sync is not None:
            A.waitcnt(vm=sync, lgkm=0); lg.p = []
            A('s_barrier')
        dma = list(dma)
        for t in range(4):
            lg.wait(('A', par, t)); lg.wait(('B', par))
            acc = v(vAcc + 16 * t, 16)
            A('v_mfma_f32_32x32x16_bf16', acc, v(vFA + 16 * par + 4 * t, 4), v(vFB + 4 * par, 4), acc)
            if nxt:
                if t == 0: reads(kk + 1, 'B'); reads(kk + 1, 0)
                elif t == 1: reads(kk + 1, 1); reads(kk + 1, 2)
                elif t == 2: reads(kk + 1, 3)
            if dma and t != 0:
                dma.pop(0)()
        return dma

    for d in w_parts(1) + x_part(1):
        d()
    A.waitcnt(vm=5)
    A('s_barrier')
    reads(0, 'B')
    for t in range(4): reads(0, t)
    for d in w_parts(2):
        d()
    saved = list(lg.p)
    A('s_mov_b32', s(sIt), '0')
    def window(last):
        carry = []
        for c in range(6):
            carry = kstep(2 * c, True, None, carry)
            assert not carry
            if last and c >= 3:
                vm = {3: 4, 4: 0, 5: None}[c]
                if c == 5:
                    kstep(2 * c + 1, False, None, [])
                else:
                    kstep(2 * c + 1, True, vm, [])
                    if c == opt.get('wotc', 4):
                        A('s_mul_i32', s(sTmp), s(sG), str(1024 * 1152))
                        A('s_lshl_b32', s(sTmp2), s(sB), '3')
                        A('s_add_u32', s(sTmp2), s(sTmp2), s(sWave))
                        A('s_mul_i32', s(sTmp2), s(sTmp2), '4608')
                        A('s_add_u32', s(sTmp), s(sTmp), s(sTmp2))
                        A('v_min_u32', t0, '35', L)
                        A('v_lshlrev_b32', t0, '7', t0)
                        A('buffer_load_dword', v(3), t0, s(sWo, 4), s(sTmp), mods='offen ' + opt.get('wo1', ''))
                        if opt.get('wo2'):
                            A('buffer_load_dword', v(3), t0, s(sWo, 4), s(sTmp), mods='offen')
                    if c == 4:
                        A('s_cmp_eq_u32', s(sPre), '0')
                        A('s_cbranch_scc1', 'LF_Q_nopre')
                        for d in kv_parts(A, opt, 0): d()
                        A.label('LF_Q_nopre')
                continue
            vm = 4 if c % 2 == 0 else 5
            nkt = opt.get('kvtouch', 0)
            if last and nkt and c == opt.get('kvtc', 2):
                A('v_and_b32', t0, '31', L)
                A('v_lshlrev_b32', t0, '7', t0)
                A('v_lshrrev_b32', t1, '5', L)
                A('s_add_u32', s(sTmp), s(sJump), '1')
                A('s_and_b32', s(sTmp), s(sTmp), '7')
                A('s_sub_u32', s(sTmp), s(sTmp), s(sJump))
                A('s_lshl_b32', s(sTmp), s(sTmp), '14')
                A('v_mul_lo_u32', t1, t1, s(sTmp))
                A('v_add_u32', t0, t0, t1)
                A('buffer_load_dword', v(3), t0, s(sV, 4), s(sVoff), mods='offen nt')
                if nkt >= 2:
                    A('buffer_load_dword', v(3), t0, s(sK, 4), s(sKoff), mods='offen nt')
            newp = w_parts(c % 3)
            if c % 2 == 0 and not (last and c == 2):
                newp = newp + x_part(((c >> 1) + 2) % 3)
            carry = kstep(2 * c + 1, True, vm, newp)
        return carry
    A.label('LF_Qloop')
    carry = window(False)
    for d in carry: d()
    assert lg.p == saved, (lg.p, saved)
    A('s_add_u32', s(sIt), s(sIt), '1')
    A('s_cmp_lg_u32', s(sIt), '3')
    A('s_cbranch_scc1', 'LF_Q_nomid')
    for r in range(64):
        A('v_mul_f32', v(vAcc + r), s(sC), v(vAcc + r))
    for t in range(4):
        for hf in range(2):
            for i in range(4):
                a = vAcc + t * 16 + 8 * hf + 2 * i
                A('v_cvt_pk_bf16_f32', v(vQ1 + 4 * (2 * t + hf) + i), v(a), v(a + 1))
    for r in range(64):
        A('v_mov_b32', v(vAcc + r), '0')
    A.label('LF_Q_nomid')
    A('s_cmp_lt_u32', s(sIt), '5')
    A('s_cbranch_scc1', 'LF_Qloop')
    window(True)
    assert not lg.p
    for r in range(64):
        A('v_mul_f32', v(vAcc + r), s(sC), v(vAcc + r))
    for t in range(4):
        for hf in range(2):
            for i in range(4):
                a = vAcc + t * 16 + 8 * hf + 2 * i
                A('v_cvt_pk_bf16_f32', v(vQ0 + 4 * (2 * t + hf) + i), v(a), v(a + 1))
    ret(A)


def phase_s(A, opt):
    L = v(vLane)
    vKa, vVa, vM, vL = 4, 12, 16, 17
    vt = list(range(18, 26))
    t0, t1, t2, t3, t4, t5 = [v(x) for x in vt[:6]]
    vO, vS, vP, vF = vW, vW + 64, vW + 96, vW + 112
    A.label('LF_S')
    A('s_barrier')
    def dma_parts(slot):
        return kv_parts(A, opt, slot)
    A('s_cmp_eq_u32', s(sPre), '3')
    A('s_cbranch_scc1', 'LF_S_pre3')
    for sl in range(1, 3):
        for d in dma_parts(sl): d()
    A.label('LF_S_pre3')
    if opt.get('wotouch', False):
        A('s_lshl_b32', s(sTmp), s(sG), '1')
        A('s_add_u32', s(sTmp), s(sTmp), s(sR))
        A('s_mul_i32', s(sTmp), s(sTmp), str(512 * 1152))
        A('s_lshl_b32', s(sTmp2), s(sB), '3')
        A('s_add_u32', s(sTmp2), s(sTmp2), s(sWave))
        A('s_mul_i32', s(sTmp2), s(sTmp2), '2304')
        A('s_add_u32', s(sTmp), s(sTmp), s(sTmp2))
        A('v_min_u32', t0, '17', L)
        A('v_lshlrev_b32', t0, '7', t0)
        A('buffer_load_dword', v(3), t0, s(sWo, 4), s(sTmp), mods='offen ' + opt.get('wotflags', ''))
    A('s_lshl_b32', s(sTmp), s(sTeam), '16')
    A('v_and_b32', t0, '31', L)
    A('v_lshrrev_b32', t1, '5', L)
    A('v_and_b32', t2, '15', L)
    A('v_xor_b32', t2, t2, t1)
    A('v_lshlrev_b32', t0, '8', t0)
    A('v_add_u32', t0, s(sTmp), t0)
    for sidx in range(8):
        A('v_xor_b32', t3, str(2 * sidx), t2)
        A('v_lshl_add_u32', v(vKa + sidx), t3, '4', t0)
    A('v_bfe_u32', t0, L, '2', '2')
    A('v_and_b32', t2, '3', L)
    A('v_bfe_u32', t3, L, '4', '1')
    A('v_lshl_add_u32', t4, t1, '2', t0)
    A('v_lshlrev_b32', t4, '8', t4)
    A('v_lshl_add_u32', t4, t3, '5', t4)
    A('v_lshl_add_u32', t4, t2, '3', t4)
    A('v_add_u32', t4, s(sTmp), t4)
    for t in range(4):
        A('v_xor_b32', t5, str(t), t0)
        A('v_lshl_add_u32', v(vVa + t), t5, '6', t4)
    for r in range(64):
        A('v_mov_b32', v(vO + r), '0')
    vC = vP
    for r in range(16):
        A('v_mov_b32', v(vC + r), '0')
    A('v_mov_b32', v(vL), '0')
    A('v_mov_b32', v(vM), '0')
    sLo = 67
    A('s_mov_b32', s(sThr), '0xff800000')
    A('s_mov_b32', s(sLo), '0xff800000')
    A('s_mov_b32', s(sIt), '0')

    lg = Cnt(A)
    KBUF = [0, 32768]; VBUF = [16384, 49152]
    def kread(par, k):
        u, sidx = k >> 3, k & 7
        A('ds_read_b128', v(vF + 4 * (k % 8), 4), v(vKa + sidx), mods=f'offset:{KBUF[par] + u * 8192}')
        lg.issue(('K', k))
    def vslot(k):
        return (8 + k) % 12
    def vread(par, k):
        e, t = k >> 2, k & 3
        for h2 in range(2):
            A('ds_read_b64_tr_b16', v(vF + 4 * vslot(k) + 2 * h2, 2), v(vVa + t), mods=f'offset:{VBUF[par] + (16 * e + 8 * h2) * 256}')
            lg.issue(('V', k))

    A.waitcnt(vm=9 if opt.get('wotouch', False) else 8)
    A('s_barrier')
    A('s_cmp_eq_u32', s(sTeam), '0')
    A('s_cbranch_scc1', 'LF_S_nst')
    A('s_barrier')
    A.label('LF_S_nst')
    for k in range(4):
        kread(0, k)
    saved = list(lg.p)
    rare = []

    PVS = opt.get('pvs', 8)
    def tile_loop(team):
        A.label(f'LF_Sloop{team}')
        for par in range(2):
            kslot, vsl = 2 * par, 2 * par + 1
            mx = v(vt[0]); mx2 = v(vt[1])
            def max_items(u, first):
                it = []
                base = vS + 16 * u
                if first:
                    it.append(lambda: A('v_max3_f32', mx, v(base), v(base + 1), v(base + 2)))
                    rest = list(range(3, 16))
                else:
                    rest = list(range(0, 16))
                while len(rest) >= 2:
                    a, b = rest[0], rest[1]; rest = rest[2:]
                    it.append(lambda a=a, b=b: A('v_max3_f32', mx, mx, v(base + a), v(base + b)))
                if rest:
                    a = rest[0]
                    it.append(lambda a=a: A('v_max_f32', mx, mx, v(base + a)))
                return it
            m0items = max_items(0, True)
            dq = dma_parts(2 * (1 - par) + 1)
            kread(par, 4); kread(par, 5)
            for k in range(16):
                u, sidx = k >> 3, k & 7
                if k % 2 == 0:
                    lg.wait(('K', min(k + 1, 15)))
                if k == 12:
                    lg.wait(('K', 15))
                    A.waitcnt(vm=8)
                    A('s_barrier')
                    assert not dq
                    dq = dma_parts(kslot)
                acc = v(vS + 16 * u, 16)
                A('v_mfma_f32_32x32x16_bf16', acc, v(vF + 4 * (k % 8), 4), v(vQ0 + 4 * sidx, 4), v(vC, 16) if sidx == 0 else acc)
                if k + 6 < 16:
                    kread(par, k + 6)
                if k >= 12:
                    vread(par, k - 12)
                if k in (1, 3, 5, 7, 14):
                    dq.pop(0)()
                if k >= 11 and m0items:
                    m0items.pop(0)()
                    if m0items: m0items.pop(0)()
            for it in m0items:
                it()
            vread(par, 4); vread(par, 5); vread(par, 6)
            for it in max_items(1, False):
                it()
            A('v_mov_b32', mx2, mx)
            A('v_permlane32_swap_b32', mx, mx2)
            A('v_max_f32', mx, mx, mx2)
            A('v_cmp_lt_f32', 'vcc', s(sThr), mx)
            lr, lb = f'LF_rare{team}{par}', f'LF_back{team}{par}'
            A('s_cbranch_vccnz', lr)
            A.label(lb)
            rare.append((lr, lb))
            def p_items(e):
                it = []
                base = vS + 8 * e
                for r in range(8):
                    it.append(lambda r=r: A('v_exp_f32', v(base + r), v(base + r)))
                for r in range(8):
                    acc = vL if r % 2 == 0 else vM
                    it.append(lambda r=r, acc=acc: A('v_add_f32', v(acc), v(acc), v(base + r)))
                for i in range(4):
                    it.append(lambda i=i: A('v_cvt_pk_bf16_f32', v(base + i), v(base + 2 * i), v(base + 2 * i + 1)))
                return it
            for it in p_items(0):
                it()
            nxt = 7
            for k in range(16):
                e, t = k >> 2, k & 3
                if k == PVS:
                    lg.wait(('V', 15))
                    A.waitcnt(vm=8)
                    A('s_barrier')
                elif k % 2 == 0:
                    lg.wait(('V', k + 1))
                acc = v(vO + 16 * t, 16)
                A('v_mfma_f32_32x32x16_bf16', acc, v(vF + 4 * vslot(k), 4), v(vS + 8 * e, 4), acc)
                n_rd = 2 if k < 4 else 1
                for _ in range(n_rd):
                    if nxt < 16 and (nxt < 12 or nxt - 12 <= k):
                        while len(lg.p) > 13:
                            lg.wait(lg.p[1])
                        vread(par, nxt); nxt += 1
                if k in (1, 4, 6):
                    dq.pop(0)()
                if k >= 12:
                    kread(1 - par, k - 12)
                if e < 3:
                    items = p_items(e + 1)
                    for it in items[5 * t:5 * t + 5]: it()
            assert nxt == 16
            assert not dq
            assert lg.p == saved, (lg.p, saved)
        A('s_add_u32', s(sIt), s(sIt), '1')
        A('s_cmp_lt_u32', s(sIt), '4')
        A('s_cbranch_scc1', f'LF_Sloop{team}')
    tile_loop(0)
    A('s_cmp_lg_u32', s(sTeam), '0')
    A('s_cbranch_scc1', 'LF_S_nst2')
    A('s_barrier')
    A.label('LF_S_nst2')
    l2 = v(vt[0]); inv = v(vt[1])
    A('v_add_f32', v(vL), v(vL), v(vM))
    A('v_mov_b32', l2, v(vL))
    A('v_permlane32_swap_b32', v(vL), l2)
    A('v_add_f32', l2, l2, v(vL))
    A('v_rcp_f32', inv, l2)
    for t in range(4):
        for r in range(16):
            A('v_mul_f32', v(vO + 16 * t + r), v(vO + 16 * t + r), inv)
        for a in range(2):
            for i, r0 in enumerate((4 * a, 4 * a + 2, 8 + 4 * a, 8 + 4 * a + 2)):
                A('v_cvt_pk_bf16_f32', v(vQ0 + 8 * t + 4 * a + i), v(vO + 16 * t + r0), v(vO + 16 * t + r0 + 1))
    A.waitcnt(lgkm=0)
    A('s_cmp_lg_u32', s(sNext), '0')
    A('s_cbranch_scc1', 'LF_S_nowait')
    A.waitcnt(vm=0)
    A.label('LF_S_nowait')
    ret(A)
    for lr, lb in rare:
        mx = v(vt[0]); delta = v(vt[2]); alpha = v(vt[3])
        A.label(lr)
        A('v_max_f32', delta, s(sLo), mx)
        A('v_max_f32', alpha, '0', delta)
        A('v_sub_f32', alpha, '0', alpha)
        A('v_exp_f32', alpha, alpha)
        for r in range(32):
            A('v_sub_f32', v(vS + r), v(vS + r), delta)
        for r in range(16):
            A('v_sub_f32', v(vC + r), v(vC + r), delta)
        A('v_mul_f32', v(vL), v(vL), alpha)
        A('v_mul_f32', v(vM), v(vM), alpha)
        for r in range(64):
            A('v_mul_f32', v(vO + r), v(vO + r), alpha)
        A('s_mov_b32', s(sThr), f32(8.0))
        A('s_mov_b32', s(sLo), '0')
        A('s_branch', lb)


def phase_o(A, opt):
    L = v(vLane)
    vOd, vOe, vOa, vOx, vOb, vOw = 4, 8, 9, 13, 14, 15
    t0, t1, t2, t3, t4, t5 = [v(x) for x in range(20, 26)]
    vAcc, vFA, vFB = vW, vW + 80, vW + 120
    OT = 98304
    RING = 10240
    sM0R = sM0O
    A.label('LF_O')
    A('v_lshrrev_b32', t0, '3', L)
    A('v_and_b32', t1, '7', L)
    A('v_bfe_u32', t2, L, '4', '2')
    A('v_lshlrev_b32', t2, '1', t2)
    A('v_xor_b32', t1, t1, t2)
    A('v_mul_u32_u24', t0, '1152', t0)
    A('v_lshl_add_u32', v(vOd), t1, '4', t0)
    for jj in range(1, 4):
        A('v_add_u32', v(vOd + jj), str(jj * (8 * 1152 - 1024)), v(vOd))
    A('v_lshrrev_b32', t0, '1', L)
    A('v_and_b32', t1, '1', L)
    A('v_mul_u32_u24', t0, '1152', t0)
    A('v_lshl_add_u32', t0, t1, '4', t0)
    A('s_mul_i32', s(sTmp), s(sWave), '96')
    A('s_sub_u32', s(sTmp), '1024', s(sTmp))
    A('v_add_u32', v(vOe), s(sTmp), t0)
    A('s_lshl_b32', s(sWoBase), s(sG), '1')
    A('s_add_u32', s(sWoBase), s(sWoBase), s(sR))
    A('s_mul_i32', s(sWoBase), s(sWoBase), str(512 * 1152))
    A('s_lshl_b32', s(sTmp), s(sWave), '7')
    A('s_add_u32', s(sWoff), s(sWoBase), s(sTmp))
    A('s_mov_b32', s(sCk), '0')
    A('s_mul_i32', s(sM0R), s(sWave), str(RING))
    def wo_parts(st, team):
        parts = []
        for jj in range(4):
            def f(jj=jj):
                if jj == 0:
                    A('s_add_u32', 'm0', s(sM0R), str(st * 5120))
                A('buffer_load_dwordx4', v(vOd + jj), s(sWo, 4), s(sWoff), mods=f'offen offset:{jj*1024} lds')
                if jj == 3:
                    if team == 0:
                        A('s_add_u32', 'm0', s(sM0R), str(st * 5120 + 4096))
                        A('buffer_load_dwordx4', v(vOe), s(sWo, 4), s(sWoff), mods='offen lds')
                    A('s_add_u32', s(sCk), s(sCk), '1')
                    A('s_add_u32', s(sWoff), s(sWoff), str(32 * 1152))
                    A('s_cmp_eq_u32', s(sCk), '32')
                    A('s_cselect_b32', s(sWoff), OOB, s(sWoff))
            parts.append(f)
        return parts
    A('s_barrier')
    A('s_cmp_lg_u32', s(sTeam), '0')
    A('s_cbranch_scc1', 'LF_O_p1')
    for d in wo_parts(0, 0) + wo_parts(1, 0): d()
    A('s_branch', 'LF_O_p2')
    A.label('LF_O_p1')
    for d in wo_parts(0, 1) + wo_parts(1, 1): d()
    A.label('LF_O_p2')
    A('v_bfe_u32', t0, L, '4', '1')
    A('v_and_b32', t2, '15', L)
    A('v_lshrrev_b32', t1, '5', L)
    A('v_lshlrev_b32', t2, '4', t2)
    A('v_lshl_add_u32', t2, t0, '10', t2)
    A('v_lshl_add_u32', t2, t1, '8', t2)
    A('s_lshr_b32', s(sTmp), s(sWave), '1')
    A('s_lshl_b32', s(sTmp), s(sTmp), '14')
    A('s_and_b32', s(sTmp2), s(sWave), '1')
    A('s_lshl_b32', s(sTmp2), s(sTmp2), '11')
    A('s_add_u32', s(sTmp), s(sTmp), s(sTmp2))
    A('s_add_u32', s(sTmp), s(sTmp), str(OT))
    A('v_add_u32', v(vOw), s(sTmp), t2)
    def owrite(src):
        for t in range(4):
            for a in range(2):
                A('ds_write_b128', v(vOw), v(src + 8 * t + 4 * a, 4), mods=f'offset:{t * 4096 + a * 512}')
    owrite(vQ1)
    A('v_lshlrev_b32', t0, '4', L)
    A('v_add_u32', v(vOb), str(OT), t0)
    A('v_lshrrev_b32', t0, '2', L)
    A('v_bfe_u32', t1, L, '3', '2')
    A('v_and_b32', t2, '3', L)
    A('v_lshlrev_b32', t3, '7', t0)
    A('v_lshl_add_u32', t3, t2, '3', t3)
    A('v_add_u32', t3, s(sM0R), t3)
    for tn in range(4):
        A('v_xor_b32', t4, str(tn), t1)
        A('v_lshl_add_u32', v(vOa + tn), t4, '5', t3)
    A('v_lshlrev_b32', t3, '5', t0)
    A('v_lshl_add_u32', t3, t2, '3', t3)
    A('v_add_u32', v(vOx), s(sM0R), t3)
    for r in range(80):
        A('v_mov_b32', v(vAcc + r), '0')
    A.waitcnt(lgkm=0)
    A('s_barrier')

    def body(team):
        nt = 5 if team == 0 else 4
        G = nt
        lg = Cnt(A)
        def aread(st, tn):
            for e in range(2):
                if tn < 4:
                    A('ds_read_b64_tr_b16', v(vFA + 20 * st + 4 * tn + 2 * e, 2), v(vOa + tn), mods=f'offset:{st * 5120 + e * 2048}')
                else:
                    A('ds_read_b64_tr_b16', v(vFA + 20 * st + 16 + 2 * e, 2), v(vOx), mods=f'offset:{st * 5120 + 4096 + e * 512}')
                lg.issue(('A', st, tn))
        def bread(st, qt, off):
            A('ds_read_b128', v(vFB + 16 * st + 4 * qt, 4), v(vOb), mods=f'offset:{off + qt * 1024}')
            lg.issue(('B', st, qt))
        A.waitcnt(vm=G)
        for tn in range(nt): aread(0, tn)
        for qt in range(4): bread(0, qt, 0)
        A.waitcnt(lgkm=0); lg.p = []
        for d in wo_parts(0, team): d()
        A('s_mov_b32', s(sIt), '0')
        A.label(f'LF_Oloop{team}')
        for st in range(2):
            A.waitcnt(vm=G)
            rd = [(lambda tn=tn: aread(1 - st, tn)) for tn in range(nt)] + [(lambda qt=qt: bread(1 - st, qt, 4096 * (st + 1))) for qt in range(4)]
            dma = wo_parts(1 - st, team)
            n = 0
            for tn in range(nt):
                for qt in range(4):
                    acc = v(vAcc + (tn * 4 + qt) * 4, 4)
                    A('v_mfma_f32_16x16x32_bf16', acc, v(vFA + 20 * st + 4 * tn, 4), v(vFB + 16 * st + 4 * qt, 4), acc)
                    n += 1
                    if rd:
                        rd.pop(0)()
                    elif dma and n >= nt + 6 and (n - nt) % 2 == 0:
                        if len(dma) == 4:
                            lg.wait(('A', 1 - st, nt - 1))
                        dma.pop(0)()
            for d in dma: d()
            A.waitcnt(lgkm=0); lg.p = []
        A('v_add_u32', v(vOb), '8192', v(vOb))
        A('s_add_u32', s(sIt), s(sIt), '1')
        A('s_cmp_lg_u32', s(sIt), '8')
        A('s_cbranch_scc1', f'LF_O_nomid{team}')
        A('s_barrier')
        owrite(vQ0)
        A('v_subrev_u32', v(vOb), '65536', v(vOb))
        A.waitcnt(lgkm=0)
        A('s_barrier')
        for qt in range(4): bread(0, qt, 0)
        A.waitcnt(lgkm=0); lg.p = []
        A.label(f'LF_O_nomid{team}')
        A('s_cmp_lt_u32', s(sIt), '16')
        A('s_cbranch_scc1', f'LF_Oloop{team}')
        A.waitcnt(vm=0)
        A('v_lshlrev_b32', t0, '4', L)
        A('s_lshl_b32', s(sTmp), s(sWave), '13')
        A('s_add_u32', s(sTmp), s(sTmp), s(sPoff))
        for tn in range(nt):
            for qp in range(2):
                d = vFA + 4 * (2 * tn + qp)
                for k in range(2):
                    a = vAcc + (tn * 4 + 2 * qp + k) * 4
                    A('v_cvt_pk_bf16_f32', v(d + 2 * k), v(a), v(a + 1))
                    A('v_cvt_pk_bf16_f32', v(d + 2 * k + 1), v(a + 2), v(a + 3))
                if tn == 2 and qp == 0:
                    A('s_add_u32', s(sTmp), s(sTmp), '4096')
                if tn == 4 and qp == 0:
                    A('s_lshl_b32', s(sTmp), s(sWave), '11')
                    A('s_add_u32', s(sTmp), s(sTmp), s(sPoff))
                    A('s_add_u32', s(sTmp), s(sTmp), '65536')
                A('buffer_store_dwordx4', v(d, 4), t0, s(sWS, 4), s(sTmp), mods=f'offen offset:{((tn % 2) * 2 + qp) * 1024} {opt.get("pflags", "")}')
    A('s_cmp_lg_u32', s(sTeam), '0')
    A('s_cbranch_scc1', 'LF_O_b1')
    body(0)
    A('s_branch', 'LF_O_ns')
    A.label('LF_O_b1')
    body(1)
    A.label('LF_O_ns')
    ret(A)


def reduce_kernel(A, opt):
    kn = 'reduce_kernel'
    A.raw('.globl %s\n.p2align 8\n.type %s,@function' % (kn, kn))
    A.label(kn)
    A('s_cmp_ge_u32', 's2', str(64 * 18))
    A('s_cbranch_scc1', 'LR_done')
    A('s_load_dwordx2', s(16, 2), s(0, 2), '80')
    A('s_load_dwordx2', s(18, 2), s(0, 2), '96')
    A('s_mul_i32', s(20), 's2', '3641')
    A('s_lshr_b32', s(20), s(20), '16')
    A('s_mul_i32', s(21), s(20), '18')
    A('s_sub_u32', s(21), 's2', s(21))
    A('v_lshrrev_b32', v(1), '6', v(0))
    A('v_readfirstlane_b32', s(22), v(1))
    A('s_lshl_b32', s(23), s(21), '2')
    A('s_add_u32', s(23), s(23), s(22))
    A('s_lshr_b32', s(24), s(23), '1')
    A('s_and_b32', s(25), s(23), '1')
    A('v_and_b32', v(1), '63', v(0))
    A('v_lshlrev_b32', v(2), '4', v(1))
    A.waitcnt(lgkm=0)
    srd(A, 4, 16, OUT_BYTES)
    srd(A, 8, 18, WS_BYTES)
    A('s_mul_i32', s(26), s(20), str(8 * PART))
    A('s_lshl_b32', s(27), s(23), '10')
    A('s_add_u32', s(26), s(26), s(27))
    A('s_and_b32', s(28), s(20), '1')
    for g in range(4):
        A('s_add_u32', s(30), s(26), str(g * 2 * PART))
        A('buffer_load_dwordx4', v(8 + 4 * g, 4), v(2), s(8, 4), s(30), mods='offen ' + opt.get('rflags', ''))
    A('s_and_b32', s(31), s(20), '31')
    A('s_lshr_b32', s(32), s(20), '5')
    A('s_lshl_b32', s(31), s(31), '6')
    A('s_lshl_b32', s(33), s(25), '5')
    A('s_add_u32', s(31), s(31), s(33))
    A('s_mul_i32', s(31), s(31), '2304')
    A('s_mul_i32', s(32), s(32), '1152')
    A('s_add_u32', s(31), s(31), s(32))
    A('s_lshl_b32', s(33), s(24), '5')
    A('s_add_u32', s(31), s(31), s(33))
    A('v_and_b32', v(3), '15', v(1))
    A('v_mul_u32_u24', v(3), '2304', v(3))
    A('v_lshrrev_b32', v(4), '4', v(1))
    A('v_lshl_add_u32', v(3), v(4), '3', v(3))
    for k in range(4):
        A.waitcnt(vm=3 - k)
        for d in range(4):
            src = v(8 + 4 * k + d)
            if k == 0:
                A('v_lshlrev_b32', v(32 + 2 * d), '16', src)
                A('v_and_b32', v(33 + 2 * d), '0xffff0000', src)
            else:
                A('v_lshlrev_b32', v(40), '16', src)
                A('v_and_b32', v(41), '0xffff0000', src)
                A('v_add_f32', v(32 + 2 * d), v(32 + 2 * d), v(40))
                A('v_add_f32', v(33 + 2 * d), v(33 + 2 * d), v(41))
    for d in range(4):
        A('v_cvt_pk_bf16_f32', v(44 + d), v(32 + 2 * d), v(33 + 2 * d))
    A('buffer_store_dwordx2', v(44, 2), v(3), s(4, 4), s(31), mods='offen ' + opt.get('oflags', ''))
    A('s_add_u32', s(31), s(31), str(16 * 2304))
    A('buffer_store_dwordx2', v(46, 2), v(3), s(4, 4), s(31), mods='offen ' + opt.get('oflags', ''))
    A.label('LR_done')
    A('s_endpgm')
    return kn


def kd(name, vgpr, sgpr):
    return f'''.amdhsa_kernel {name}
  .amdhsa_next_free_vgpr {vgpr}
  .amdhsa_next_free_sgpr {sgpr}
  .amdhsa_accum_offset {vgpr}
  .amdhsa_group_segment_fixed_size 0
  .amdhsa_kernarg_size 104
  .amdhsa_user_sgpr_count 2
  .amdhsa_user_sgpr_kernarg_segment_ptr 1
  .amdhsa_system_sgpr_workgroup_id_x 1
.end_amdhsa_kernel
'''

def generate(opt):
    A = Asm()
    ka = fused_kernel(A, opt)
    kb = reduce_kernel(A, opt)
    errs = A.check_branches()
    for e in errs:
        print('HAZARD:', e, file=sys.stderr)
    assert not errs
    hdr = [l for l in HDR if l.startswith(';') and '@launch' not in l]
    out = '\n'.join(hdr) + '\n'
    out += f'; @launch kernel={ka} grid=(256,1,1) block=(512,1,1) lds=163840\n'
    out += f'; @launch kernel={kb} grid=(1152,1,1) block=(256,1,1) lds=0\n'
    out += '.amdgcn_target "amdgcn-amd-amdhsa--gfx950"\n.text\n'
    out += A.text().replace('CODEBYTES', 'LCODE_END-fused_kernel')
    out += 'LCODE_END:\n'
    out += '.section .rodata,"a"\n.p2align 6\n'
    out += kd(ka, 256, 102)
    out += '.p2align 6\n'
    out += kd(kb, 48, 40)
    return out

if __name__ == '__main__':
    opt = {}
    for a in sys.argv[2:]:
        k, val = a.split('=')
        opt[k] = eval(val)
    txt = generate(opt)
    open(sys.argv[1], 'w').write(txt)
    print('wrote', sys.argv[1], len(txt))
```

```python
import sys, math, struct
sys.path.insert(0, 'gen')
from asmlib import *

NAME = 'concat_heads__gqa_block_cached__gqa_block_cached__near_ridge'
HDR = open('cdna_kernels/' + NAME + '.s.ref').read().split('\n')

X_BYTES = 32 * 64 * 576 * 2
KV_BYTES = 32 * 16 * 512 * 128 * 2
W_BYTES = 576 * 4096 * 2
OUT_BYTES = 32 * 64 * 1152 * 2
PART = 64 * 576 * 2
WS_BYTES = 64 * 8 * PART
OOB = '0x7f000000'

def f32(x):
    return hex(int.from_bytes(struct.pack('<f', x), 'little'))

class Cnt:
    def __init__(self, A, maxn=15):
        self.A = A; self.p = []; self.maxn = maxn
    def issue(self, tag):
        self.p.append(tag)
        assert len(self.p) <= self.maxn, len(self.p)
    def wait(self, tag):
        idx = None
        for k, t in enumerate(self.p):
            if t == tag:
                idx = k
        if idx is None:
            return
        self.A.waitcnt(lgkm=len(self.p) - idx - 1)
        self.p = self.p[idx + 1:]

def srd(A, d, plo, nbytes):
    A('s_mov_b32', s(d), s(plo))
    A('s_and_b32', s(d + 1), s(plo + 1), '0xffff')
    A('s_mov_b32', s(d + 2), hex(nbytes))
    A('s_mov_b32', s(d + 3), '0x00020000')

sX, sK, sV, sWq, sWo, sWS = 4, 8, 12, 16, 20, 24
sWave, sTeam, sTmp, sTmp2, sType, sC, sThr = 28, 29, 30, 31, 32, 33, 34
sR, sIt, sT, sKVoff, sKVbase, sM0KV = 35, 36, 37, 38, 39, 40
sWbase, sXbase, sWoff, sXoff, sCk, sXk = 41, 42, 43, 44, 45, 46
sG, sB, sP, sW3 = 47, 48, 49, 50
sM0W, sM0X, sWoBase, sPoff, sFlagZ, sFlagS = 51, 52, 53, 54, 55, 56
sRet = 58
sM0O = 60
sLd = 70
sStamp = 72
vTid, vLane = 0, 1
vA0 = 4
vQ0, vQ1 = 32, 64
vKd, vVd = 27, 31
sKoff, sVoff, sKn, sVn, sPre, sNext, sJump = 38, 57, 37, 63, 64, 65, 66
vW = 96


def fused_kernel(A, opt):
    kn = 'fused_kernel'
    A.raw('.globl %s\n.p2align 8\n.type %s,@function' % (kn, kn))
    A.label(kn)
    L = v(vLane)
    nst = [0]
    def stamp():
        if opt.get('stamp'):
            A('s_memrealtime', s(sStamp + 2 * nst[0], 2))
            A('s_memtime', s(70, 2))
            A.waitcnt(lgkm=0)
            A('s_mov_b32', s(sStamp + 2 * nst[0] + 1), s(70))
            nst[0] += 1

    A('s_cmp_ge_u32', 's2', '256')
    A('s_cbranch_scc1', 'LF_done')
    if opt.get('codewarm', False):
        A('s_getpc_b64', s(96, 2))
        A('s_and_b32', s(96), s(96), '0xffffff00')
        A('s_and_b32', s(97), s(97), '0xffff')
        A('s_mov_b32', s(98), 'CODEBYTES')
        A('s_mov_b32', s(99), '0x00020000')
        A('v_lshlrev_b32', v(2), '7', v(vTid))
        A('buffer_load_dword', v(3), v(2), s(96, 4), '0', mods='offen ' + opt.get('cflags', ''))
    A('s_load_dwordx8', s(72, 8), s(0, 2), '0')
    A('s_load_dwordx2', s(80, 2), s(0, 2), '32')
    A('s_load_dwordx8', s(84, 8), s(0, 2), '40')
    A('s_load_dwordx2', s(92, 2), s(0, 2), '72')
    A('s_load_dwordx2', s(94, 2), s(0, 2), '96')
    A('s_and_b32', s(sTmp), 's2', '7')
    A('s_lshr_b32', s(sP), s(sTmp), '2')
    A('s_and_b32', s(sG), s(sTmp), '3')
    A('s_lshr_b32', s(sB), 's2', '3')
    A('s_add_u32', s(sType), s(sB), s(sG))
    A('s_and_b32', s(sType), s(sType), '1')
    if opt.get('typemode') == 'p': A('s_mov_b32', s(sType), s(sP))
    if opt.get('typemode') == 'g': A('s_and_b32', s(sType), s(sG), '1')
    A('v_and_b32', L, '63', v(vTid))
    A('v_lshrrev_b32', v(2), '6', v(vTid))
    A('v_readfirstlane_b32', s(sWave), v(2))
    A('s_lshr_b32', s(sTeam), s(sWave), '2')
    A('s_and_b32', s(sW3), s(sWave), '3')
    A('s_mov_b32', s(sC), f32((128 ** -0.5) * math.log2(math.e)))
    A('s_mov_b32', s(sThr), f32(8.0 / ((128 ** -0.5) * math.log2(math.e))))
    A.waitcnt(lgkm=0)
    A('s_cmp_eq_u32', s(sP), '0')
    for k in range(4):
        A('s_cselect_b64', s(72 + 2 * k, 2), s(72 + 2 * k, 2), s(84 + 2 * k, 2))
    A('s_cselect_b64', s(80, 2), s(80, 2), s(92, 2))
    srd(A, sX, 72, X_BYTES)
    srd(A, sK, 74, KV_BYTES)
    srd(A, sV, 76, KV_BYTES)
    srd(A, sWq, 78, W_BYTES)
    srd(A, sWo, 80, W_BYTES)
    srd(A, sWS, 94, (0x10000000 if opt.get('stamp') else WS_BYTES))
    A('s_lshl_b32', s(sKVbase), s(sB), '4')
    A('s_lshl_b32', s(sTmp), s(sG), '2')
    A('s_add_u32', s(sKVbase), s(sKVbase), s(sTmp))
    A('s_add_u32', s(sKVbase), s(sKVbase), s(sTeam))
    A('s_lshl_b32', s(sKVbase), s(sKVbase), '17')
    A('s_lshl_b32', s(sTmp), s(sW3), '12')
    A('s_add_u32', s(sKVbase), s(sKVbase), s(sTmp))
    A('s_lshl_b32', s(sM0KV), s(sTeam), '16')
    A('s_add_u32', s(sM0KV), s(sM0KV), s(sTmp))
    A('s_lshl_b32', s(sM0W), s(sWave), '12')
    A('s_lshl_b32', s(sM0X), s(sWave), '10')
    A('s_lshl_b32', s(sXbase), s(sB), '6')
    A('s_lshl_b32', s(sTmp), s(sWave), '3')
    A('s_add_u32', s(sXbase), s(sXbase), s(sTmp))
    A('s_mulk_i32', s(sXbase), '1152')
    A('s_lshl_b32', s(sPoff), s(sP), '5')
    A('s_add_u32', s(sPoff), s(sPoff), s(sB))
    A('s_lshl_b32', s(sPoff), s(sPoff), '2')
    A('s_add_u32', s(sPoff), s(sPoff), s(sG))
    A('s_mul_i32', s(sPoff), s(sPoff), str(2 * PART))
    A('v_lshrrev_b32', v(4), '4', L)
    A('v_and_b32', v(5), '15', L)
    for jj in range(4):
        A('v_add_u32', v(6), str(4 * jj), v(4))
        A('v_xor_b32', v(6), v(6), v(5))
        A('v_lshlrev_b32', v(6), '4', v(6))
        A('v_lshl_add_u32', v(vKd + jj), v(4), '8', v(6))
    A('v_lshlrev_b32', v(6), '2', v(4))
    A('v_xor_b32', v(6), v(6), v(5))
    A('v_lshlrev_b32', v(6), '4', v(6))
    A('v_lshl_add_u32', v(vVd), v(4), '8', v(6))
    if opt.get('q0touch', False):
        A('s_lshr_b32', s(sTmp2), s(sB), '1')
        A('s_lshl_b32', s(sTmp2), s(sTmp2), '3')
        A('s_add_u32', s(sTmp2), s(sTmp2), s(sWave))
        A('s_mul_i32', s(sTmp2), s(sTmp2), '36')
        A('v_min_u32', v(4), '35', L)
        A('v_add_u32', v(4), s(sTmp2), v(4))
        A('v_and_b32', v(5), '7', v(4))
        A('v_lshrrev_b32', v(4), '3', v(4))
        A('v_lshlrev_b32', v(4), '13', v(4))
        A('v_lshl_add_u32', v(4), v(5), '7', v(4))
        A('s_lshl_b32', s(sTmp), s(sG), '1')
        A('s_add_u32', s(sTmp), s(sTmp), s(sType))
        A('s_lshl_b32', s(sTmp), s(sTmp), '10')
        A('buffer_load_dword', v(3), v(4), s(sWq, 4), s(sTmp), mods='offen nt')
        A('v_lshlrev_b32', v(4), '7', L)
        A('buffer_load_dword', v(3), v(4), s(sX, 4), s(sXbase), mods='offen nt')
        A('buffer_load_dword', v(3), v(4), s(sX, 4), s(sXbase), mods='offen offset:1024 nt')
    if opt.get('tlbwarm', False):
        A('s_cmp_lg_u32', s(sWave), '0')
        A('s_cbranch_scc1', 'LF_ntw')
        A('v_lshlrev_b32', v(4), '13', L)
        A('buffer_load_dword', v(3), v(4), s(sK, 4), s(sKVbase), mods='offen nt')
        A('buffer_load_dword', v(3), v(4), s(sV, 4), s(sKVbase), mods='offen nt')
        A.label('LF_ntw')
    stamp()

    def kvinit(r):
        A('s_add_u32', s(sKoff), s(sKVbase), str(r << 18))
        if opt.get('kv_oob'): A('s_mov_b32', s(sKoff), '0x70000000')
        A('s_mov_b32', s(sVoff), s(sKoff))
        A('s_mov_b32', s(sKn), '0')
        A('s_mov_b32', s(sVn), '0')
    def call(lbl):
        A('s_call_b64', s(sRet, 2), lbl)
        A('s_nop', '7'); A('s_nop', '7')
    def setr(r):
        A('s_mov_b32', s(sR), str(r))
    def mov32(dst, src):
        for i in range(32):
            A('v_mov_b32', v(dst + i), v(src + i))
    def swap32():
        for i in range(32):
            A('v_swap_b32', v(vQ0 + i), v(vQ1 + i))

    setr(1)
    rot = opt.get('rot', 1)
    if rot == 0:
        A('s_mov_b32', s(sJump), '0')
    elif rot == 1:
        A('s_and_b32', s(sJump), s(sB), '7')
    elif rot == 2:
        A('s_lshl_b32', s(sJump), s(sTeam), '2')
        A('s_add_u32', s(sJump), s(sJump), s(sB))
        A('s_add_u32', s(sJump), s(sJump), s(sG))
        A('s_and_b32', s(sJump), s(sJump), '7')
    A('s_lshl_b32', s(sKoff), s(sJump), '14')
    A('s_add_u32', s(sKoff), s(sKoff), s(sKVbase))
    A('s_mov_b32', s(sVoff), s(sKoff))
    A('s_mov_b32', s(sKn), '0')
    A('s_mov_b32', s(sVn), '0')
    A('s_mov_b32', s(sPre), '1'); A('s_mov_b32', s(sNext), '1')
    call('LF_Q'); stamp()
    setr(0)
    call('LF_S'); stamp()
    swap32()
    setr(1)
    A('s_mov_b32', s(sPre), '3'); A('s_mov_b32', s(sNext), '0')
    call('LF_S'); stamp()
    setr(0)
    call('LF_O'); stamp()
    A.label('LF_end')
    if opt.get('stamp'):
        A('s_lshl_b32', s(sTmp), 's2', '3')
        A('s_add_u32', s(sTmp), s(sTmp), s(sWave))
        A('s_lshl_b32', s(sTmp), s(sTmp), '6')
        A('s_add_u32', s(sTmp), s(sTmp), hex(200 << 20))
        A('v_mov_b32', v(6), '0')
        A('s_mov_b64', 'exec', '1')
        for i in range(7):
            A('v_mov_b32', v(4), s(sStamp + 2 * i))
            A('v_mov_b32', v(5), s(sStamp + 2 * i + 1))
            A('buffer_store_dwordx2', v(4, 2), v(6), s(sWS, 4), s(sTmp), mods=f'offen offset:{8*i}')
            A.waitcnt(vm=0)
    A.label('LF_done')
    A('s_endpgm')

    phase_q(A, opt)
    phase_s(A, opt)
    phase_o(A, opt)
    return kn


def kv_parts(A, opt, slot):
    kvflags = opt.get('kvflags', 'nt')
    parts = []
    isk = slot % 2 == 0
    so, sn = (sKoff, sKn) if isk else (sVoff, sVn)
    for jj in range(4):
        def f(jj=jj):
            if jj == 0:
                A('s_add_u32', 'm0', s(sM0KV), str(slot * 16384))
            if isk:
                A('buffer_load_dwordx4', v(vKd + jj), s(sK, 4), s(so), mods=f'offen offset:{jj*1024} {kvflags} lds')
            else:
                A('buffer_load_dwordx4', v(vVd), s(sV, 4), s(so), mods=f'offen offset:{jj*1024} {kvflags} lds')
            if jj == 3:
                A('s_add_u32', s(sn), s(sn), '1')
                A('s_add_u32', s(sTmp), s(sn), s(sJump))
                A('s_and_b32', s(sTmp), s(sTmp), '7')
                A('s_lshl_b32', s(sTmp), s(sTmp), '14')
                A('s_lshr_b32', s(sTmp2), s(sn), '3')
                A('s_lshl_b32', s(sTmp2), s(sTmp2), '18')
                A('s_add_u32', s(sTmp), s(sTmp), s(sTmp2))
                A('s_add_u32', s(so), s(sTmp), s(sKVbase))
                A('s_cmp_ge_u32', s(sn), '16')
                A('s_cselect_b32', s(so), OOB, s(so))
        parts.append(f)
    return parts


def ret(A):
    A('s_nop', '7'); A('s_nop', '7')
    A('s_setpc_b64', s(sRet, 2))


def phase_q(A, opt):
    L = v(vLane)
    vWd, vWa, vXd, vXa = 4, 8, 12, 13
    t0, t1, t2, t3, t4, t5 = [v(x) for x in range(21, 27)]
    vAcc, vFA, vFB = vW, vW + 64, vW + 96
    WST = [98304, 16384, 131072]
    XSL = [49152, 57344, 81920]
    A.label('LF_Q')
    for jj in range(4):
        A('v_xor_b32', t0, str(4 * jj), L)
        A('v_lshlrev_b32', t0, '4', t0)
        A('v_add_u32', v(vWd + jj), str(jj * (8192 - 1024)), t0)
    A('s_and_b32', s(sTmp), s(sWave), '1')
    A('s_lshl_b32', s(sTmp), s(sTmp), '2')
    A('v_lshrrev_b32', t0, '4', L)
    A('v_add_u32', t0, s(sTmp), t0)
    A('v_and_b32', t1, '7', L)
    A('v_xor_b32', t0, t0, t1)
    A('v_lshlrev_b32', t0, '4', t0)
    A('v_lshrrev_b32', t1, '3', L)
    A('v_mul_u32_u24', t1, '1152', t1)
    A('v_add_u32', v(vXd), t0, t1)
    A('s_lshl_b32', s(sWbase), s(sG), '1')
    A('s_add_u32', s(sWbase), s(sWbase), s(sR))
    A('s_lshl_b32', s(sWbase), s(sWbase), '10')
    A('s_lshl_b32', s(sTmp), s(sWave), '15')
    A('s_add_u32', s(sWbase), s(sWbase), s(sTmp))
    A('s_mul_i32', s(sTmp), s(sB), '57')
    A('s_lshr_b32', s(sTmp), s(sTmp), '9')
    A('s_mul_i32', s(sTmp), s(sTmp), '9')
    A('s_sub_u32', s(sXk), s(sB), s(sTmp))
    A('s_lshl_b32', s(sCk), s(sXk), '1')
    A('s_mov_b32', s(sFlagS), '0')

    def w_parts(st):
        parts = []
        for jj in range(4):
            def f(jj=jj):
                if jj == 0:
                    A('s_lshl_b32', s(sWoff), s(sCk), '18')
                    A('s_add_u32', s(sWoff), s(sWoff), s(sWbase))
                    A('s_add_u32', s(sCk), s(sCk), '1')
                    A('s_cmp_eq_u32', s(sCk), '18')
                    A('s_cselect_b32', s(sCk), '0', s(sCk))
                    A('s_add_u32', s(sFlagS), s(sFlagS), '1')
                    A('s_cmp_eq_u32', s(sFlagS), '18')
                    A('s_cselect_b32', s(sTmp), '1024', '0')
                    A('s_sub_u32', s(sWbase), s(sWbase), s(sTmp))
                if jj == 0 or not opt.get('m0once', True):
                    A('s_add_u32', 'm0', s(sM0W), str(WST[st]))
                A('buffer_load_dwordx4', v(vWd + jj), s(sWq, 4), s(sWoff), mods=f'offen offset:{jj*1024} {opt.get("wqflags", "")} lds')
            parts.append(f)
        return parts
    def x_part(sl):
        def f():
            A('s_lshl_b32', s(sXoff), s(sXk), '7')
            A('s_add_u32', s(sXoff), s(sXoff), s(sXbase))
            A('s_add_u32', s(sXk), s(sXk), '1')
            A('s_cmp_eq_u32', s(sXk), '9')
            A('s_cselect_b32', s(sXk), '0', s(sXk))
            A('s_add_u32', 'm0', s(sM0X), str(XSL[sl]))
            A('buffer_load_dwordx4', v(vXd), s(sX, 4), s(sXoff), mods='offen ' + opt.get('xflags', '') + ' lds')
        return [f]
    A('s_barrier')
    for d in x_part(0) + w_parts(0):
        d()
    if opt.get('k0early', True):
        for d in kv_parts(A, opt, 0): d()
    A('v_bfe_u32', t0, L, '2', '2')
    A('v_lshrrev_b32', t1, '5', L)
    A('v_and_b32', t2, '1', L)
    A('v_bfe_u32', t3, L, '1', '1')
    A('v_lshl_add_u32', t2, t2, '1', t3)
    A('v_bfe_u32', t3, L, '4', '1')
    A('v_lshl_add_u32', t4, t1, '3', t0)
    A('v_lshlrev_b32', t4, '10', t4)
    A('v_lshl_add_u32', t4, t3, '5', t4)
    A('v_lshl_add_u32', t4, t2, '3', t4)
    A('s_lshr_b32', s(sTmp), s(sWave), '1')
    A('s_lshl_b32', s(sTmp), s(sTmp), '8')
    A('v_add_u32', t4, s(sTmp), t4)
    for t in range(4):
        A('v_xor_b32', t5, str(t), t0)
        A('v_lshl_add_u32', v(vWa + t), t5, '6', t4)
    vWa2 = 17
    for t in range(4):
        A('v_add_u32', v(vWa2 + t), '0x18000', v(vWa + t))
    A('v_and_b32', t0, '31', L)
    A('s_and_b32', s(sTmp), s(sWave), '1')
    A('s_lshl_b32', s(sTmp), s(sTmp), '5')
    A('v_add_u32', t0, s(sTmp), t0)
    A('v_bfe_u32', t2, L, '1', '3')
    A('v_xor_b32', t2, t2, t1)
    for s4 in range(4):
        A('v_xor_b32', t3, str(2 * s4), t2)
        A('v_lshlrev_b32', t3, '4', t3)
        A('v_lshl_add_u32', v(vXa + s4), t0, '7', t3)
        A('v_add_u32', v(vXa + s4), '49152', v(vXa + s4))
    for r in range(64):
        A('v_mov_b32', v(vAcc + r), '0')

    lg = Cnt(A)
    def reads(kk, part):
        c, sidx = (kk >> 1) % 3, kk & 1
        X, s4 = (kk >> 2) % 3, kk & 3
        par = kk & 1
        base = WST[c]
        if part == 'B':
            A('ds_read_b128', v(vFB + 4 * par, 4), v(vXa + s4), mods=f'offset:{XSL[X] - 49152}')
            lg.issue(('B', par))
        else:
            t = part
            for e in range(2):
                off = base + (16 * sidx + 4 * e) * 1024
                if base >= 98304:
                    A('ds_read_b64_tr_b16', v(vFA + 16 * par + 4 * t + 2 * e, 2), v(vWa2 + t), mods=f'offset:{off - 98304}')
                else:
                    A('ds_read_b64_tr_b16', v(vFA + 16 * par + 4 * t + 2 * e, 2), v(vWa + t), mods=f'offset:{off}')
                lg.issue(('A', par, t))
    def kstep(kk, nxt, sync, dma):
        par = kk & 1
        if sync is not None:
            A.waitcnt(vm=sync, lgkm=0); lg.p = []
            A('s_barrier')
        dma = list(dma)
        for t in range(4):
            lg.wait(('A', par, t)); lg.wait(('B', par))
            acc = v(vAcc + 16 * t, 16)
            A('v_mfma_f32_32x32x16_bf16', acc, v(vFA + 16 * par + 4 * t, 4), v(vFB + 4 * par, 4), acc)
            if nxt:
                if t == 0: reads(kk + 1, 'B'); reads(kk + 1, 0)
                elif t == 1: reads(kk + 1, 1); reads(kk + 1, 2)
                elif t == 2: reads(kk + 1, 3)
            if dma and t != 0:
                dma.pop(0)()
        return dma

    for d in w_parts(1) + x_part(1):
        d()
    A.waitcnt(vm=9 if opt.get('k0early', True) else 5)
    A('s_barrier')
    reads(0, 'B')
    for t in range(4): reads(0, t)
    for d in w_parts(2):
        d()
    saved = list(lg.p)
    A('s_mov_b32', s(sIt), '0')
    def window(last):
        carry = []
        for c in range(6):
            carry = kstep(2 * c, True, None, carry)
            assert not carry
            if last and c >= 3:
                vm = {3: 4, 4: 0, 5: None}[c]
                if c == 5:
                    kstep(2 * c + 1, False, None, [])
                else:
                    kstep(2 * c + 1, True, vm, [])
                    if c == opt.get('wotc', 4):
                        A('s_mul_i32', s(sTmp), s(sG), str(1024 * 1152))
                        A('s_lshl_b32', s(sTmp2), s(sB), '3')
                        A('s_add_u32', s(sTmp2), s(sTmp2), s(sWave))
                        A('s_mul_i32', s(sTmp2), s(sTmp2), '4608')
                        A('s_add_u32', s(sTmp), s(sTmp), s(sTmp2))
                        A('v_min_u32', t0, '35', L)
                        A('v_lshlrev_b32', t0, '7', t0)
                        A('buffer_load_dword', v(3), t0, s(sWo, 4), s(sTmp), mods='offen ' + opt.get('wo1', ''))
                        if opt.get('wo2'):
                            A('buffer_load_dword', v(3), t0, s(sWo, 4), s(sTmp), mods='offen')
                    if c == 4 and not opt.get('k0early', True):
                        A('s_cmp_eq_u32', s(sPre), '0')
                        A('s_cbranch_scc1', 'LF_Q_nopre')
                        for d in kv_parts(A, opt, 0): d()
                        A.label('LF_Q_nopre')
                continue
            vm = 4 if c % 2 == 0 else 5
            nkt = opt.get('kvtouch', 0)
            if last and nkt and c == opt.get('kvtc', 2):
                A('v_and_b32', t0, '31', L)
                A('v_lshlrev_b32', t0, '7', t0)
                A('v_lshrrev_b32', t1, '5', L)
                A('s_add_u32', s(sTmp), s(sJump), '1')
                A('s_and_b32', s(sTmp), s(sTmp), '7')
                A('s_sub_u32', s(sTmp), s(sTmp), s(sJump))
                A('s_lshl_b32', s(sTmp), s(sTmp), '14')
                A('v_mul_lo_u32', t1, t1, s(sTmp))
                A('v_add_u32', t0, t0, t1)
                A('buffer_load_dword', v(3), t0, s(sV, 4), s(sVoff), mods='offen nt')
                if nkt >= 2:
                    A('buffer_load_dword', v(3), t0, s(sK, 4), s(sKoff), mods='offen nt')
            newp = w_parts(c % 3)
            if c % 2 == 0 and not (last and c == 2):
                newp = newp + x_part(((c >> 1) + 2) % 3)
            carry = kstep(2 * c + 1, True, vm, newp)
        return carry
    A.label('LF_Qloop')
    carry = window(False)
    for d in carry: d()
    assert lg.p == saved, (lg.p, saved)
    A('s_add_u32', s(sIt), s(sIt), '1')
    A('s_cmp_lg_u32', s(sIt), '3')
    A('s_cbranch_scc1', 'LF_Q_nomid')
    for r in range(64):
        A('v_mul_f32', v(vAcc + r), s(sC), v(vAcc + r))
    for t in range(4):
        for hf in range(2):
            for i in range(4):
                a = vAcc + t * 16 + 8 * hf + 2 * i
                A('v_cvt_pk_bf16_f32', v(vQ1 + 4 * (2 * t + hf) + i), v(a), v(a + 1))
    for r in range(64):
        A('v_mov_b32', v(vAcc + r), '0')
    A.label('LF_Q_nomid')
    A('s_cmp_lt_u32', s(sIt), '5')
    A('s_cbranch_scc1', 'LF_Qloop')
    window(True)
    assert not lg.p
    for r in range(64):
        A('v_mul_f32', v(vAcc + r), s(sC), v(vAcc + r))
    for t in range(4):
        for hf in range(2):
            for i in range(4):
                a = vAcc + t * 16 + 8 * hf + 2 * i
                A('v_cvt_pk_bf16_f32', v(vQ0 + 4 * (2 * t + hf) + i), v(a), v(a + 1))
    ret(A)


def phase_s(A, opt):
    L = v(vLane)
    vKa, vVa, vM, vL = 4, 12, 16, 17
    vt = list(range(18, 26))
    t0, t1, t2, t3, t4, t5 = [v(x) for x in vt[:6]]
    vO, vS, vP, vF = vW, vW + 64, vW + 96, vW + 112
    A.label('LF_S')
    A('s_barrier')
    def dma_parts(slot):
        return kv_parts(A, opt, slot)
    A('s_cmp_eq_u32', s(sPre), '3')
    A('s_cbranch_scc1', 'LF_S_pre3')
    for sl in range(1, 3):
        for d in dma_parts(sl): d()
    A.label('LF_S_pre3')
    if opt.get('wotouch', False):
        A('s_lshl_b32', s(sTmp), s(sG), '1')
        A('s_add_u32', s(sTmp), s(sTmp), s(sR))
        A('s_mul_i32', s(sTmp), s(sTmp), str(512 * 1152))
        A('s_lshl_b32', s(sTmp2), s(sB), '3')
        A('s_add_u32', s(sTmp2), s(sTmp2), s(sWave))
        A('s_mul_i32', s(sTmp2), s(sTmp2), '2304')
        A('s_add_u32', s(sTmp), s(sTmp), s(sTmp2))
        A('v_min_u32', t0, '17', L)
        A('v_lshlrev_b32', t0, '7', t0)
        A('buffer_load_dword', v(3), t0, s(sWo, 4), s(sTmp), mods='offen ' + opt.get('wotflags', ''))
    A('s_lshl_b32', s(sTmp), s(sTeam), '16')
    A('v_and_b32', t0, '31', L)
    A('v_lshrrev_b32', t1, '5', L)
    A('v_and_b32', t2, '15', L)
    A('v_xor_b32', t2, t2, t1)
    A('v_lshlrev_b32', t0, '8', t0)
    A('v_add_u32', t0, s(sTmp), t0)
    for sidx in range(8):
        A('v_xor_b32', t3, str(2 * sidx), t2)
        A('v_lshl_add_u32', v(vKa + sidx), t3, '4', t0)
    A('v_bfe_u32', t0, L, '2', '2')
    A('v_and_b32', t2, '3', L)
    A('v_bfe_u32', t3, L, '4', '1')
    A('v_lshl_add_u32', t4, t1, '2', t0)
    A('v_lshlrev_b32', t4, '8', t4)
    A('v_lshl_add_u32', t4, t3, '5', t4)
    A('v_lshl_add_u32', t4, t2, '3', t4)
    A('v_add_u32', t4, s(sTmp), t4)
    for t in range(4):
        A('v_xor_b32', t5, str(t), t0)
        A('v_lshl_add_u32', v(vVa + t), t5, '6', t4)
    for r in range(64):
        A('v_mov_b32', v(vO + r), '0')
    vC = vP
    for r in range(16):
        A('v_mov_b32', v(vC + r), '0')
    A('v_mov_b32', v(vL), '0')
    A('v_mov_b32', v(vM), '0')
    sLo = 67
    A('s_mov_b32', s(sThr), '0xff800000')
    A('s_mov_b32', s(sLo), '0xff800000')
    A('s_mov_b32', s(sIt), '0')

    lg = Cnt(A)
    KBUF = [0, 32768]; VBUF = [16384, 49152]
    def kread(par, k):
        u, sidx = k >> 3, k & 7
        A('ds_read_b128', v(vF + 4 * (k % 8), 4), v(vKa + sidx), mods=f'offset:{KBUF[par] + u * 8192}')
        lg.issue(('K', k))
    def vslot(k):
        return (8 + k) % 12
    def vread(par, k):
        e, t = k >> 2, k & 3
        for h2 in range(2):
            A('ds_read_b64_tr_b16', v(vF + 4 * vslot(k) + 2 * h2, 2), v(vVa + t), mods=f'offset:{VBUF[par] + (16 * e + 8 * h2) * 256}')
            lg.issue(('V', k))

    A.waitcnt(vm=9 if opt.get('wotouch', False) else 8)
    A('s_barrier')
    A('s_cmp_eq_u32', s(sTeam), '0')
    A('s_cbranch_scc1', 'LF_S_nst')
    A('s_barrier')
    A.label('LF_S_nst')
    for k in range(4):
        kread(0, k)
    saved = list(lg.p)
    rare = []

    PVS = opt.get('pvs', 8)
    def tile_loop(team):
        A.label(f'LF_Sloop{team}')
        for par in range(2):
            kslot, vsl = 2 * par, 2 * par + 1
            mx = v(vt[0]); mx2 = v(vt[1])
            def max_items(u, first):
                it = []
                base = vS + 16 * u
                if first:
                    it.append(lambda: A('v_max3_f32', mx, v(base), v(base + 1), v(base + 2)))
                    rest = list(range(3, 16))
                else:
                    rest = list(range(0, 16))
                while len(rest) >= 2:
                    a, b = rest[0], rest[1]; rest = rest[2:]
                    it.append(lambda a=a, b=b: A('v_max3_f32', mx, mx, v(base + a), v(base + b)))
                if rest:
                    a = rest[0]
                    it.append(lambda a=a: A('v_max_f32', mx, mx, v(base + a)))
                return it
            m0items = max_items(0, True)
            dq = dma_parts(2 * (1 - par) + 1)
            kread(par, 4); kread(par, 5)
            for k in range(16):
                u, sidx = k >> 3, k & 7
                if k % 2 == 0:
                    lg.wait(('K', min(k + 1, 15)))
                if k == 12:
                    lg.wait(('K', 15))
                    A.waitcnt(vm=8)
                    A('s_barrier')
                    assert not dq
                    dq = dma_parts(kslot)
                acc = v(vS + 16 * u, 16)
                A('v_mfma_f32_32x32x16_bf16', acc, v(vF + 4 * (k % 8), 4), v(vQ0 + 4 * sidx, 4), v(vC, 16) if sidx == 0 else acc)
                if k + 6 < 16:
                    kread(par, k + 6)
                if k >= 12:
                    vread(par, k - 12)
                if k in (1, 3, 5, 7, 14):
                    dq.pop(0)()
                if k >= 11 and m0items:
                    m0items.pop(0)()
                    if m0items: m0items.pop(0)()
            for it in m0items:
                it()
            vread(par, 4); vread(par, 5); vread(par, 6)
            for it in max_items(1, False):
                it()
            A('v_mov_b32', mx2, mx)
            A('v_permlane32_swap_b32', mx, mx2)
            A('v_max_f32', mx, mx, mx2)
            A('v_cmp_lt_f32', 'vcc', s(sThr), mx)
            lr, lb = f'LF_rare{team}{par}', f'LF_back{team}{par}'
            A('s_cbranch_vccnz', lr)
            A.label(lb)
            rare.append((lr, lb))
            def p_items(e):
                it = []
                base = vS + 8 * e
                for r in range(8):
                    it.append(lambda r=r: A('v_exp_f32', v(base + r), v(base + r)))
                for r in range(8):
                    acc = vL if r % 2 == 0 else vM
                    it.append(lambda r=r, acc=acc: A('v_add_f32', v(acc), v(acc), v(base + r)))
                for i in range(4):
                    it.append(lambda i=i: A('v_cvt_pk_bf16_f32', v(base + i), v(base + 2 * i), v(base + 2 * i + 1)))
                return it
            for it in p_items(0):
                it()
            nxt = 7
            for k in range(16):
                e, t = k >> 2, k & 3
                if k == PVS:
                    lg.wait(('V', 15))
                    A.waitcnt(vm=8)
                    A('s_barrier')
                elif k % 2 == 0:
                    lg.wait(('V', k + 1))
                acc = v(vO + 16 * t, 16)
                A('v_mfma_f32_32x32x16_bf16', acc, v(vF + 4 * vslot(k), 4), v(vS + 8 * e, 4), acc)
                n_rd = 2 if k < 4 else 1
                for _ in range(n_rd):
                    if nxt < 16 and (nxt < 12 or nxt - 12 <= k):
                        while len(lg.p) > 13:
                            lg.wait(lg.p[1])
                        vread(par, nxt); nxt += 1
                if k in (1, 4, 6):
                    dq.pop(0)()
                if k >= 12:
                    kread(1 - par, k - 12)
                if e < 3:
                    items = p_items(e + 1)
                    for it in items[5 * t:5 * t + 5]: it()
            assert nxt == 16
            assert not dq
            assert lg.p == saved, (lg.p, saved)
        A('s_add_u32', s(sIt), s(sIt), '1')
        A('s_cmp_lt_u32', s(sIt), '4')
        A('s_cbranch_scc1', f'LF_Sloop{team}')
    tile_loop(0)
    A('s_cmp_lg_u32', s(sTeam), '0')
    A('s_cbranch_scc1', 'LF_S_nst2')
    A('s_barrier')
    A.label('LF_S_nst2')
    l2 = v(vt[0]); inv = v(vt[1])
    A('v_add_f32', v(vL), v(vL), v(vM))
    A('v_mov_b32', l2, v(vL))
    A('v_permlane32_swap_b32', v(vL), l2)
    A('v_add_f32', l2, l2, v(vL))
    A('v_rcp_f32', inv, l2)
    for t in range(4):
        for r in range(16):
            A('v_mul_f32', v(vO + 16 * t + r), v(vO + 16 * t + r), inv)
        for a in range(2):
            for i, r0 in enumerate((4 * a, 4 * a + 2, 8 + 4 * a, 8 + 4 * a + 2)):
                A('v_cvt_pk_bf16_f32', v(vQ0 + 8 * t + 4 * a + i), v(vO + 16 * t + r0), v(vO + 16 * t + r0 + 1))
    A.waitcnt(lgkm=0)
    A('s_cmp_lg_u32', s(sNext), '0')
    A('s_cbranch_scc1', 'LF_S_nowait')
    A.waitcnt(vm=0)
    A.label('LF_S_nowait')
    ret(A)
    for lr, lb in rare:
        mx = v(vt[0]); delta = v(vt[2]); alpha = v(vt[3])
        A.label(lr)
        A('v_max_f32', delta, s(sLo), mx)
        A('v_max_f32', alpha, '0', delta)
        A('v_sub_f32', alpha, '0', alpha)
        A('v_exp_f32', alpha, alpha)
        for r in range(32):
            A('v_sub_f32', v(vS + r), v(vS + r), delta)
        for r in range(16):
            A('v_sub_f32', v(vC + r), v(vC + r), delta)
        A('v_mul_f32', v(vL), v(vL), alpha)
        A('v_mul_f32', v(vM), v(vM), alpha)
        for r in range(64):
            A('v_mul_f32', v(vO + r), v(vO + r), alpha)
        A('s_mov_b32', s(sThr), f32(8.0))
        A('s_mov_b32', s(sLo), '0')
        A('s_branch', lb)


def phase_o(A, opt):
    L = v(vLane)
    vOd, vOe, vOa, vOx, vOb, vOw = 4, 8, 9, 13, 14, 15
    t0, t1, t2, t3, t4, t5 = [v(x) for x in range(20, 26)]
    vAcc, vFA, vFB = vW, vW + 80, vW + 120
    OT = 98304
    RING = 10240
    sM0R = sM0O
    A.label('LF_O')
    A('v_lshrrev_b32', t0, '3', L)
    A('v_and_b32', t1, '7', L)
    A('v_bfe_u32', t2, L, '4', '2')
    A('v_lshlrev_b32', t2, '1', t2)
    A('v_xor_b32', t1, t1, t2)
    A('v_mul_u32_u24', t0, '1152', t0)
    A('v_lshl_add_u32', v(vOd), t1, '4', t0)
    for jj in range(1, 4):
        A('v_add_u32', v(vOd + jj), str(jj * (8 * 1152 - 1024)), v(vOd))
    A('v_lshrrev_b32', t0, '1', L)
    A('v_and_b32', t1, '1', L)
    A('v_mul_u32_u24', t0, '1152', t0)
    A('v_lshl_add_u32', t0, t1, '4', t0)
    A('s_mul_i32', s(sTmp), s(sWave), '96')
    A('s_sub_u32', s(sTmp), '1024', s(sTmp))
    A('v_add_u32', v(vOe), s(sTmp), t0)
    A('s_lshl_b32', s(sWoBase), s(sG), '1')
    A('s_add_u32', s(sWoBase), s(sWoBase), s(sR))
    A('s_mul_i32', s(sWoBase), s(sWoBase), str(512 * 1152))
    A('s_lshl_b32', s(sTmp), s(sWave), '7')
    A('s_add_u32', s(sWoff), s(sWoBase), s(sTmp))
    A('s_mov_b32', s(sCk), '0')
    A('s_mul_i32', s(sM0R), s(sWave), str(RING))
    def wo_parts(st, team):
        parts = []
        for jj in range(4):
            def f(jj=jj):
                if jj == 0:
                    A('s_add_u32', 'm0', s(sM0R), str(st * 5120))
                A('buffer_load_dwordx4', v(vOd + jj), s(sWo, 4), s(sWoff), mods=f'offen offset:{jj*1024} lds')
                if jj == 3:
                    if team == 0:
                        A('s_add_u32', 'm0', s(sM0R), str(st * 5120 + 4096))
                        A('buffer_load_dwordx4', v(vOe), s(sWo, 4), s(sWoff), mods='offen lds')
                    A('s_add_u32', s(sCk), s(sCk), '1')
                    A('s_add_u32', s(sWoff), s(sWoff), str(32 * 1152))
                    A('s_cmp_eq_u32', s(sCk), '32')
                    A('s_cselect_b32', s(sWoff), OOB, s(sWoff))
            parts.append(f)
        return parts
    A('s_barrier')
    A('s_cmp_lg_u32', s(sTeam), '0')
    A('s_cbranch_scc1', 'LF_O_p1')
    for d in wo_parts(0, 0) + wo_parts(1, 0): d()
    A('s_branch', 'LF_O_p2')
    A.label('LF_O_p1')
    for d in wo_parts(0, 1) + wo_parts(1, 1): d()
    A.label('LF_O_p2')
    A('v_bfe_u32', t0, L, '4', '1')
    A('v_and_b32', t2, '15', L)
    A('v_lshrrev_b32', t1, '5', L)
    A('v_lshlrev_b32', t2, '4', t2)
    A('v_lshl_add_u32', t2, t0, '10', t2)
    A('v_lshl_add_u32', t2, t1, '8', t2)
    A('s_lshr_b32', s(sTmp), s(sWave), '1')
    A('s_lshl_b32', s(sTmp), s(sTmp), '14')
    A('s_and_b32', s(sTmp2), s(sWave), '1')
    A('s_lshl_b32', s(sTmp2), s(sTmp2), '11')
    A('s_add_u32', s(sTmp), s(sTmp), s(sTmp2))
    A('s_add_u32', s(sTmp), s(sTmp), str(OT))
    A('v_add_u32', v(vOw), s(sTmp), t2)
    def owrite(src):
        for t in range(4):
            for a in range(2):
                A('ds_write_b128', v(vOw), v(src + 8 * t + 4 * a, 4), mods=f'offset:{t * 4096 + a * 512}')
    owrite(vQ1)
    A('v_lshlrev_b32', t0, '4', L)
    A('v_add_u32', v(vOb), str(OT), t0)
    A('v_lshrrev_b32', t0, '2', L)
    A('v_bfe_u32', t1, L, '3', '2')
    A('v_and_b32', t2, '3', L)
    A('v_lshlrev_b32', t3, '7', t0)
    A('v_lshl_add_u32', t3, t2, '3', t3)
    A('v_add_u32', t3, s(sM0R), t3)
    for tn in range(4):
        A('v_xor_b32', t4, str(tn), t1)
        A('v_lshl_add_u32', v(vOa + tn), t4, '5', t3)
    A('v_lshlrev_b32', t3, '5', t0)
    A('v_lshl_add_u32', t3, t2, '3', t3)
    A('v_add_u32', v(vOx), s(sM0R), t3)
    for r in range(80):
        A('v_mov_b32', v(vAcc + r), '0')
    A.waitcnt(lgkm=0)
    A('s_barrier')

    def body(team):
        nt = 5 if team == 0 else 4
        G = nt
        lg = Cnt(A)
        def aread(st, tn):
            for e in range(2):
                if tn < 4:
                    A('ds_read_b64_tr_b16', v(vFA + 20 * st + 4 * tn + 2 * e, 2), v(vOa + tn), mods=f'offset:{st * 5120 + e * 2048}')
                else:
                    A('ds_read_b64_tr_b16', v(vFA + 20 * st + 16 + 2 * e, 2), v(vOx), mods=f'offset:{st * 5120 + 4096 + e * 512}')
                lg.issue(('A', st, tn))
        def bread(st, qt, off):
            A('ds_read_b128', v(vFB + 16 * st + 4 * qt, 4), v(vOb), mods=f'offset:{off + qt * 1024}')
            lg.issue(('B', st, qt))
        A.waitcnt(vm=G)
        for tn in range(nt): aread(0, tn)
        for qt in range(4): bread(0, qt, 0)
        A.waitcnt(lgkm=0); lg.p = []
        for d in wo_parts(0, team): d()
        A('s_mov_b32', s(sIt), '0')
        A.label(f'LF_Oloop{team}')
        for st in range(2):
            A.waitcnt(vm=G)
            rd = [(lambda tn=tn: aread(1 - st, tn)) for tn in range(nt)] + [(lambda qt=qt: bread(1 - st, qt, 4096 * (st + 1))) for qt in range(4)]
            dma = wo_parts(1 - st, team)
            n = 0
            for tn in range(nt):
                for qt in range(4):
                    acc = v(vAcc + (tn * 4 + qt) * 4, 4)
                    A('v_mfma_f32_16x16x32_bf16', acc, v(vFA + 20 * st + 4 * tn, 4), v(vFB + 16 * st + 4 * qt, 4), acc)
                    n += 1
                    if rd:
                        rd.pop(0)()
                    elif dma and n >= nt + 6 and (n - nt) % 2 == 0:
                        if len(dma) == 4:
                            lg.wait(('A', 1 - st, nt - 1))
                        dma.pop(0)()
            for d in dma: d()
            A.waitcnt(lgkm=0); lg.p = []
        A('v_add_u32', v(vOb), '8192', v(vOb))
        A('s_add_u32', s(sIt), s(sIt), '1')
        A('s_cmp_lg_u32', s(sIt), '8')
        A('s_cbranch_scc1', f'LF_O_nomid{team}')
        A('s_barrier')
        owrite(vQ0)
        A('v_subrev_u32', v(vOb), '65536', v(vOb))
        A.waitcnt(lgkm=0)
        A('s_barrier')
        for qt in range(4): bread(0, qt, 0)
        A.waitcnt(lgkm=0); lg.p = []
        A.label(f'LF_O_nomid{team}')
        A('s_cmp_lt_u32', s(sIt), '16')
        A('s_cbranch_scc1', f'LF_Oloop{team}')
        A.waitcnt(vm=0)
        A('v_lshlrev_b32', t0, '4', L)
        A('s_lshl_b32', s(sTmp), s(sWave), '13')
        A('s_add_u32', s(sTmp), s(sTmp), s(sPoff))
        for tn in range(nt):
            for qp in range(2):
                d = vFA + 4 * (2 * tn + qp)
                for k in range(2):
                    a = vAcc + (tn * 4 + 2 * qp + k) * 4
                    A('v_cvt_pk_bf16_f32', v(d + 2 * k), v(a), v(a + 1))
                    A('v_cvt_pk_bf16_f32', v(d + 2 * k + 1), v(a + 2), v(a + 3))
                if tn == 2 and qp == 0:
                    A('s_add_u32', s(sTmp), s(sTmp), '4096')
                if tn == 4 and qp == 0:
                    A('s_lshl_b32', s(sTmp), s(sWave), '11')
                    A('s_add_u32', s(sTmp), s(sTmp), s(sPoff))
                    A('s_add_u32', s(sTmp), s(sTmp), '65536')
                A('buffer_store_dwordx4', v(d, 4), t0, s(sWS, 4), s(sTmp), mods=f'offen offset:{((tn % 2) * 2 + qp) * 1024} {opt.get("pflags", "")}')
    A('s_cmp_lg_u32', s(sTeam), '0')
    A('s_cbranch_scc1', 'LF_O_b1')
    body(0)
    A('s_branch', 'LF_O_ns')
    A.label('LF_O_b1')
    body(1)
    A.label('LF_O_ns')
    ret(A)


def reduce_kernel(A, opt):
    kn = 'reduce_kernel'
    A.raw('.globl %s\n.p2align 8\n.type %s,@function' % (kn, kn))
    A.label(kn)
    A('s_cmp_ge_u32', 's2', str(64 * 18))
    A('s_cbranch_scc1', 'LR_done')
    A('s_load_dwordx2', s(16, 2), s(0, 2), '80')
    A('s_load_dwordx2', s(18, 2), s(0, 2), '96')
    A('s_mul_i32', s(20), 's2', '3641')
    A('s_lshr_b32', s(20), s(20), '16')
    A('s_mul_i32', s(21), s(20), '18')
    A('s_sub_u32', s(21), 's2', s(21))
    A('v_lshrrev_b32', v(1), '6', v(0))
    A('v_readfirstlane_b32', s(22), v(1))
    A('s_lshl_b32', s(23), s(21), '2')
    A('s_add_u32', s(23), s(23), s(22))
    A('s_lshr_b32', s(24), s(23), '1')
    A('s_and_b32', s(25), s(23), '1')
    A('v_and_b32', v(1), '63', v(0))
    A('v_lshlrev_b32', v(2), '4', v(1))
    A.waitcnt(lgkm=0)
    srd(A, 4, 16, OUT_BYTES)
    srd(A, 8, 18, WS_BYTES)
    A('s_mul_i32', s(26), s(20), str(8 * PART))
    A('s_lshl_b32', s(27), s(23), '10')
    A('s_add_u32', s(26), s(26), s(27))
    A('s_and_b32', s(28), s(20), '1')
    for g in range(4):
        A('s_add_u32', s(30), s(26), str(g * 2 * PART))
        A('buffer_load_dwordx4', v(8 + 4 * g, 4), v(2), s(8, 4), s(30), mods='offen ' + opt.get('rflags', ''))
    A('s_and_b32', s(31), s(20), '31')
    A('s_lshr_b32', s(32), s(20), '5')
    A('s_lshl_b32', s(31), s(31), '6')
    A('s_lshl_b32', s(33), s(25), '5')
    A('s_add_u32', s(31), s(31), s(33))
    A('s_mul_i32', s(31), s(31), '2304')
    A('s_mul_i32', s(32), s(32), '1152')
    A('s_add_u32', s(31), s(31), s(32))
    A('s_lshl_b32', s(33), s(24), '5')
    A('s_add_u32', s(31), s(31), s(33))
    A('v_and_b32', v(3), '15', v(1))
    A('v_mul_u32_u24', v(3), '2304', v(3))
    A('v_lshrrev_b32', v(4), '4', v(1))
    A('v_lshl_add_u32', v(3), v(4), '3', v(3))
    for k in range(4):
        A.waitcnt(vm=3 - k)
        for d in range(4):
            src = v(8 + 4 * k + d)
            if k == 0:
                A('v_lshlrev_b32', v(32 + 2 * d), '16', src)
                A('v_and_b32', v(33 + 2 * d), '0xffff0000', src)
            else:
                A('v_lshlrev_b32', v(40), '16', src)
                A('v_and_b32', v(41), '0xffff0000', src)
                A('v_add_f32', v(32 + 2 * d), v(32 + 2 * d), v(40))
                A('v_add_f32', v(33 + 2 * d), v(33 + 2 * d), v(41))
    for d in range(4):
        A('v_cvt_pk_bf16_f32', v(44 + d), v(32 + 2 * d), v(33 + 2 * d))
    A('buffer_store_dwordx2', v(44, 2), v(3), s(4, 4), s(31), mods='offen ' + opt.get('oflags', ''))
    A('s_add_u32', s(31), s(31), str(16 * 2304))
    A('buffer_store_dwordx2', v(46, 2), v(3), s(4, 4), s(31), mods='offen ' + opt.get('oflags', ''))
    A.label('LR_done')
    A('s_endpgm')
    return kn


def kd(name, vgpr, sgpr):
    return f'''.amdhsa_kernel {name}
  .amdhsa_next_free_vgpr {vgpr}
  .amdhsa_next_free_sgpr {sgpr}
  .amdhsa_accum_offset {vgpr}
  .amdhsa_group_segment_fixed_size 0
  .amdhsa_kernarg_size 104
  .amdhsa_user_sgpr_count 2
  .amdhsa_user_sgpr_kernarg_segment_ptr 1
  .amdhsa_system_sgpr_workgroup_id_x 1
.end_amdhsa_kernel
'''

def generate(opt):
    A = Asm()
    ka = fused_kernel(A, opt)
    kb = reduce_kernel(A, opt)
    errs = A.check_branches()
    for e in errs:
        print('HAZARD:', e, file=sys.stderr)
    assert not errs
    hdr = [l for l in HDR if l.startswith(';') and '@launch' not in l]
    out = '\n'.join(hdr) + '\n'
    out += f'; @launch kernel={ka} grid=(256,1,1) block=(512,1,1) lds=163840\n'
    out += f'; @launch kernel={kb} grid=(1152,1,1) block=(256,1,1) lds=0\n'
    out += '.amdgcn_target "amdgcn-amd-amdhsa--gfx950"\n.text\n'
    out += A.text().replace('CODEBYTES', 'LCODE_END-fused_kernel')
    out += 'LCODE_END:\n'
    out += '.section .rodata,"a"\n.p2align 6\n'
    out += kd(ka, 256, 102)
    out += '.p2align 6\n'
    out += kd(kb, 48, 40)
    return out

if __name__ == '__main__':
    opt = {}
    for a in sys.argv[2:]:
        k, val = a.split('=')
        opt[k] = eval(val)
    txt = generate(opt)
    open(sys.argv[1], 'w').write(txt)
    print('wrote', sys.argv[1], len(txt))
```
